```python
import torch

def _softmax(x, axis=-1):
    return torch.softmax(x, dim=axis)
def _gelu(x):
    return torch.nn.functional.gelu(x, approximate="tanh")
def _silu(x):
    return torch.nn.functional.silu(x)
def _sigmoid(x):
    return torch.sigmoid(x)
def _layernorm(x, axis=-1, eps=1e-5):
    m = x.mean(dim=axis, keepdim=True)
    v = x.var(dim=axis, keepdim=True, unbiased=False)
    return (x - m) / torch.sqrt(v + eps)
def _scatter_add(tgt, idx, src, axis=0):
    return tgt.clone().index_add_(axis, idx, src)
def _segment_sum(src, seg, n):
    out = torch.zeros((n,) + src.shape[1:], dtype=src.dtype)
    return out.index_add_(0, seg, src)
def _pad(x, pw):
    flat = tuple(v for pair in reversed(pw) for v in pair)
    return torch.nn.functional.pad(x, flat)

kernel_name = 'parallel_sum__linear_attn_block__dense_activation_mish__prompt'

def setup_inputs():

    _w = (lambda a: (lambda t: t.to(torch.bfloat16) if t.is_floating_point() else t)(torch.as_tensor(a)))
    def _A_setup():
        B, S, D = 1, 2048, 512
        return {
            "x": _w((lambda *s: torch.randn(*s, dtype=torch.bfloat16) * 0.05)(B, S, D)),
            "wqkv": _w((lambda *s: torch.randn(*s, dtype=torch.bfloat16) * 0.1)(D, 3 * D)),
            "wo": _w((lambda *s: torch.randn(*s, dtype=torch.bfloat16) * 0.05)(D, D)),
        }
    _A_in = _A_setup()

    def _B_setup():
        B, S, D, F = 1, 2048, 512, 1792
        return {
            "x": _w((lambda *s: torch.randn(*s, dtype=torch.bfloat16) * 0.05)(B, S, D)),
            "w1": _w((lambda *s: torch.randn(*s, dtype=torch.bfloat16) * 0.8)(D, F) * (D ** -0.5)),
            "b1": _w((lambda *s: torch.randn(*s, dtype=torch.bfloat16) * 0.4)(F)),
            "w2": _w((lambda *s: torch.randn(*s, dtype=torch.bfloat16) * 0.1)(F, D) * (F ** -0.5)),
        }
    _B_in = _B_setup()

    return {
        "A_x": _A_in["x"],
        "A_wqkv": _A_in["wqkv"],
        "A_wo": _A_in["wo"],
        "B_x": _B_in["x"],
        "B_w1": _B_in["w1"],
        "B_b1": _B_in["b1"],
        "B_w2": _B_in["w2"],
    }

def reference(A_x, A_wqkv, A_wo, B_x, B_w1, B_b1, B_w2):
    def _A_ref(x, wqkv, wo):
        B, S, D = x.shape
        H = 32; Dh = D // H
        qkv = (lambda x, *d: x.permute(*d))((x @ wqkv).reshape(B, S, 3, H, Dh), 2, 0, 3, 1, 4)
        q, k, v = qkv[0], qkv[1], qkv[2]
        phi = lambda t: torch.where(t > 0, t + 1, torch.exp(t)) + 1e-6
        pq, pk = phi(q), phi(k)
        kv = torch.einsum("bhsd,bhse->bhde", pk, v)
        z = torch.einsum("bhsd->bhd", pk)
        num = torch.einsum("bhqd,bhde->bhqe", pq, kv)
        den = torch.einsum("bhqd,bhd->bhq", pq, z)[..., None] + 1e-6
        o = num / den
        return (lambda x, *d: x.permute(*d))(o, 0, 2, 1, 3).reshape(B, S, D) @ wo

    def _B_ref(x, w1, b1, w2):
        h = torch.einsum("bsd,df->bsf", x, w1) + b1
        sp = torch.log1p(torch.exp(-torch.abs(h))) + torch.where(h > 0, h, torch.zeros_like(h))
        act = h * torch.tanh(sp)
        return torch.einsum("bsf,fd->bsd", act, w2)

    x = A_x
    xn = _layernorm(x, axis=-1)
    return x + _A_ref(xn, A_wqkv, A_wo) + _B_ref(xn, B_w1, B_b1, B_w2)
```

```python
import re
TRANS = ("v_exp_f32", "v_log_f32", "v_rcp_f32", "v_rsq_f32", "v_sqrt_f32", "v_sin_f32", "v_cos_f32")
def regs_of(tok):
    tok = tok.strip().lstrip("-")
    tok = tok.replace("abs(", "").replace(")", "").replace("|", "")
    m = re.fullmatch(r"([vsa])(\d+)", tok)
    if m: return {(m.group(1), int(m.group(2)))}
    m = re.fullmatch(r"([vsa])\[(\d+):(\d+)\]", tok)
    if m: return {(m.group(1), r) for r in range(int(m.group(2)), int(m.group(3)) + 1)}
    if tok == "vcc": return {("s", 106), ("s", 107)}
    if tok == "vcc_lo": return {("s", 106)}
    if tok == "vcc_hi": return {("s", 107)}
    if tok == "exec": return {("s", 126), ("s", 127)}
    if tok == "m0": return {("s", 124)}
    return set()
class I:
    __slots__ = ("text", "tag", "need", "mn", "kind", "defs", "uses", "ops", "cuses", "glue", "raw", "maybe")
    def __init__(self, text, tag=None, need=(), glue=False, raw=False, maybe=False):
        self.text = text.strip(); self.tag = tag; self.need = tuple(need) if not isinstance(need, str) else (need,)
        self.glue = glue
        self.raw = raw; self.maybe = maybe
        t = self.text.split(";")[0].strip()
        self.defs = set(); self.uses = set(); self.cuses = set(); self.ops = []
        if t.endswith(":") or t.startswith(".") or not t:
            self.mn = ""; self.kind = "label" if t.endswith(":") else "dir"; return
        p = t.split(None, 1); mn = self.mn = p[0]
        rest = p[1] if len(p) > 1 else ""
        ops = [o.strip() for o in rest.split(",")] if rest else []
        if ops:
            last = ops[-1].split()
            mods = last[1:]; ops[-1] = last[0] if last else ""
        else: mods = []
        self.ops = ops
        R = [regs_of(o) for o in ops]
        U = lambda idx: set().union(*[R[i] for i in idx]) if idx else set()
        n = len(ops)
        base = re.sub(r"_(e32|e64|sdwa|dpp)$", "", mn)
        if mn.startswith("v_mfma"):
            self.kind = "mfma"; self.defs = R[0]; self.uses = U([1, 2]); self.cuses = R[3]
        elif mn.startswith("v_"):
            self.kind = "trans" if base in TRANS else "valu"
            if mn.startswith("v_cmp"): self.defs = R[0]; self.uses = U(range(1, n))
            elif mn.startswith("v_permlane"): self.defs = U([0, 1]); self.uses = U([0, 1])
            elif "_co_" in mn: self.defs = U([0, 1]); self.uses = U(range(2, n))
            elif mn.startswith("v_nop"): pass
            else:
                self.defs = R[0]; self.uses = U(range(1, n))
                if mn.startswith(("v_fmac", "v_dot2c", "v_writelane", "v_pk_fmac")): self.uses |= R[0]
        elif mn.startswith("ds_"):
            self.kind = "ds"
            if mn.startswith(("ds_read", "ds_bpermute", "ds_swizzle", "ds_permute")) or "_rtn" in mn: self.defs = R[0]; self.uses = U(range(1, n))
            else: self.uses = U(range(n))
        elif mn.startswith(("buffer_", "global_")):
            self.kind = "vmem"
            if "lds" in mods or "_lds_" in mn: self.uses = U(range(n)) | {("s", 124)}; self.kind = "vmem"
            elif "_load" in mn: self.defs = R[0]; self.uses = U(range(1, n))
            elif "_atomic" in mn and "sc0" in mods: self.defs = R[0]; self.uses = U(range(n))
            else: self.uses = U(range(n))
        elif mn.startswith(("s_load", "s_memtime", "s_memrealtime", "s_buffer_load")):
            self.kind = "smem"; self.defs = R[0]; self.uses = U(range(1, n))
        elif mn.startswith("s_"):
            self.kind = "salu"
            if mn.startswith(("s_cmp", "s_waitcnt", "s_nop", "s_barrier", "s_branch", "s_cbranch", "s_setprio", "s_sleep", "s_endpgm", "s_bitcmp")): self.uses = U(range(n))
            else:
                self.defs = R[0]; self.uses = U(range(1, n))
                if mn.startswith(("s_addk", "s_mulk")): self.uses |= R[0]
        else: raise Exception("unknown instr " + t)
    def states(self):
        if self.kind in ("label", "dir"): return 0
        if self.mn == "s_nop": return int(self.ops[0], 0) + 1
        return 1
    def isdma(self): return self.kind == "vmem" and ("s", 124) in self.uses
    def cost(self):
        if self.kind in ("label", "dir"): return 0
        if self.kind in ("trans", "mfma"): return 2
        return 1

def L(x):
    out = []
    if isinstance(x, I): return [x]
    if isinstance(x, str):
        for ln in x.split("\n"):
            if ln.strip(): out.append(I(ln))
        return out
    for e in x: out += L(e)
    return out

def interleave(groups, side, start=0, end=None):
    side = L(side)
    end = len(groups) if end is None else end
    units = []
    for ins in side:
        if ins.glue and units: units[-1].append(ins)
        else: units.append([ins])
    tot = sum(i.cost() for i in side)
    out = []; k = 0; acc = 0
    for g, grp in enumerate(groups):
        out += L(grp)
        if start <= g < end:
            target = tot * (g - start + 1) / (end - start)
            while k < len(units) and (acc + sum(i.cost() for i in units[k]) / 2 <= target or g == end - 1):
                out += units[k]; acc += sum(i.cost() for i in units[k]); k += 1
    assert k == len(units)
    return out

class Tracker:
    def __init__(self):
        self.q = {"vm": [], "lg": []}
        self.smem = False
        self.done_tags = set()
        self.hist = []
        self.nnop = 0; self.nwait = 0; self.last_maybe_wait = (None, None)
    def _retire(self, c, n):
        q = self.q[c]
        while q and (n == 0 or sum(1 for e in q[1:] if not e[2]) >= n):
            d, tag, mb = q.pop(0)
            if tag: self.done_tags.add(tag)
    def _hazard(self, ins):
        need = 0; dist = 0
        vre = lambda s: {r for r in s if r[0] in "va"}
        sre = lambda s: {r for r in s if r[0] == "s"}
        for p in reversed(self.hist):
            if dist > 20: break
            req = 0
            pv = p.kind in ("valu", "trans")
            iv = ins.kind in ("valu", "trans")
            if pv and ins.kind == "mfma" and vre(p.defs) & (ins.uses | ins.cuses): req = 2
            if p.kind == "mfma":
                big = "32x32" in p.mn
                if ins.kind == "mfma":
                    if p.defs & ins.uses: req = 12 if big else 8
                    elif p.defs & ins.cuses and not (p.defs == ins.cuses and p.mn == ins.mn): req = 10 if big else 6
                    elif p.defs & ins.defs and not (p.defs == ins.cuses): req = max(req, 10 if big else 6)
                elif p.defs & (ins.uses | ins.defs): req = 12 if big else 8
                if iv and p.cuses & ins.defs: req = max(req, 7 if big else 3)
            if p.kind == "trans" and ins.kind == "valu" and p.defs & ins.uses: req = max(req, 1)
            if p.kind == "trans" and ins.kind in ("ds", "vmem") and p.defs & ins.uses: req = max(req, 1)
            if pv and ins.mn.startswith("v_permlane") and vre(p.defs) & ins.uses: req = max(req, 2)
            if pv and ins.mn.startswith(("v_readfirstlane", "v_readlane")) and vre(p.defs) & ins.uses: req = max(req, 1)
            if pv and "dpp" in ins.text and vre(p.defs) & ins.uses: req = max(req, 2)
            if pv and iv and sre(p.defs) & ins.uses: req = max(req, 2)
            if pv and ins.kind == "vmem" and sre(p.defs) & ins.uses: req = max(req, 5)
            if pv and ins.kind in ("salu", "smem") and sre(p.defs) & ins.uses and not ins.mn.startswith("s_cbranch"): req = max(req, 1)
            if p.mn.startswith("v_dot2") and iv and p.defs & (ins.uses | ins.defs):
                same = p.mn == ins.mn and not (p.defs & (regs_of(ins.ops[1]) | regs_of(ins.ops[2])))
                if not same: req = max(req, 3)
            if p.kind == "salu" and ("s", 124) in p.defs and ins.isdma(): req = max(req, 1)
            if p.kind == "vmem" and re.search(r"store_dwordx[34]", p.mn) and (regs_of(p.ops[0]) | (regs_of(p.ops[1]) if p.mn.startswith("global") else set())) & ins.defs: req = max(req, 2)
            need = max(need, req - dist)
            if ins.maybe or not p.maybe: dist += p.states()
        return need
    def run(self, stream):
        out = []
        def emit(i):
            out.append(i); self.hist.append(i)
            if len(self.hist) > 40: self.hist.pop(0)
        for ins in L(stream):
            if ins.kind in ("label", "dir"):
                out.append(ins); continue
            if ins.mn == "s_waitcnt" and ins.maybe:
                emit(ins); continue
            if ins.mn == "s_waitcnt":
                m = re.search(r"vmcnt\((\d+)\)", ins.text)
                if m: self._retire("vm", int(m.group(1)))
                m = re.search(r"lgkmcnt\((\d+)\)", ins.text)
                if m:
                    n = int(m.group(1))
                    if n == 0: self.smem = False; self._retire("lg", 0)
                    elif not self.smem: self._retire("lg", n)
                emit(ins); continue
            w = {}
            touch = ins.uses | ins.defs | ins.cuses
            for c in ("vm", "lg"):
                q = self.q[c]
                for idx in range(len(q) - 1, -1, -1):
                    d, tag, mb = q[idx]
                    hit = bool(d & touch) or (tag is not None and tag in ins.need)
                    if hit and ins.kind == ("vmem" if c == "vm" else "ds") and not (d & (ins.uses)) and not (tag is not None and tag in ins.need):
                        hit = False
                    if hit:
                        w[c] = sum(1 for e in q[idx + 1:] if not e[2]); break
            for t in ins.need:
                if t not in self.done_tags and not any(tag == t for c in self.q for _, tag, _m in self.q[c]):
                    raise Exception("need of unknown tag %s at %s" % (t, ins.text))
            if w and ins.maybe:
                parts = []
                if "vm" in w: parts.append("vmcnt(%d)" % min(w["vm"], 63))
                if "lg" in w: parts.append("lgkmcnt(%d)" % (0 if self.smem else min(w["lg"], 15)))
                if not (parts == self.last_maybe_wait[0] and self.last_maybe_wait[1] == (len(self.q["vm"]), len(self.q["lg"]))):
                    emit(I("s_waitcnt " + " ".join(parts), maybe=True)); self.nwait += 1
                self.last_maybe_wait = (parts, (len(self.q["vm"]), len(self.q["lg"])))
            elif w:
                parts = []
                if "vm" in w:
                    n = min(w["vm"], 63); parts.append("vmcnt(%d)" % n); self._retire("vm", n)
                if "lg" in w:
                    n = 0 if self.smem else min(w["lg"], 15)
                    parts.append("lgkmcnt(%d)" % n); self._retire("lg", n)
                    if n == 0: self.smem = False
                emit(I("s_waitcnt " + " ".join(parts))); self.nwait += 1
            if ins.mn == "s_nop" and ins.raw: continue
            h = self._hazard(ins)
            while h > 0:
                k = min(h, 16); emit(I("s_nop %d" % (k - 1), maybe=ins.maybe)); h -= k; self.nnop += 1
            emit(ins)
            if ins.kind == "vmem": self.q["vm"].append((set(ins.defs), ins.tag, ins.maybe))
            elif ins.kind == "ds": self.q["lg"].append((set(ins.defs), ins.tag, ins.maybe))
            elif ins.kind == "smem": self.smem = True; self.q["lg"].append((set(ins.defs), ins.tag, ins.maybe))
        return out
def Need(*tags, regs=None):
    i = I("s_nop 0", need=tags, raw=True)
    if regs:
        for r in regs: i.uses |= regs_of(r)
    return i
def text(stream): return "\n".join(("" if i.kind == "label" else "  ") + i.text for i in stream)
def vr(a, n=1): return "v%d" % a if n == 1 else "v[%d:%d]" % (a, a + n - 1)
def sr(a, n=1): return "s%d" % a if n == 1 else "s[%d:%d]" % (a, a + n - 1)

def maybe(stream):
    out = L(stream)
    for i in out: i.maybe = True
    return out
```

```python
import sys, copy
from asmgen import *

NAME = "parallel_sum__linear_attn_block__dense_activation_mish__prompt"
LOG2E = 0x3fb8aa3b; LN2 = 0x3f317218; EPS6 = 0x358637bd; EPS5 = 0x3727c5ac

ACTF = 0; KVF = 4096; W2F = 6144; FLG_KB = 11
KVZ = 16384; KVS = 65536; W2T = 1 << 20; ACT = 4 << 20; STAMPS = 16 << 20
WS_BYTES = 0x10000000; OOB = 0x40000000
R0 = 0; R1 = 65536; XB = 65536; XW = 20480; SP = 131072
STG = 147456; STG2 = 155648; BIAS = 157696; RTAB = 158720; CNT = 159232; ZP = 159360; SR = 160384; ZR = 162432; LDS_BYTES = 162688
C_FULL = 0; C_FREEX = 16; C_FREE = 20; C_KVP = 32; C_KVR = 36
S_X = 4; S_W = 8; S_WS = 12; S_U1 = 16; S_U2 = 20; S_OUT = 24; S_DBG = 28; S_B1 = 32
KA = 36
sW = 56; sI = 57; sG = 58; sTY = 59; sRT = 60; sCG = 61; sROT = 62; sPITCH = 63
sT = [64, 65, 66, 67, 68, 69]
sA = list(range(70, 86))
sSPIN = 86; sC0 = 87; sC1 = 88; sM16 = 90
sST = 92

class Cfg:
    stamps = False
    p1map = "sq"; p2map = "r4c8"
    rot = 1
    nB = 18
    partA = 5; partB = 5
    spin = 1 << 16
    codepf = True
    probe = 0

class Gen:
    def __init__(self, cfg):
        self.c = cfg; self.slow = []; self.nlab = 0; self.nst = 0
    def lab(self, p):
        self.nlab += 1; return "L_%s_%d" % (p, self.nlab)
    def stamp(self, n, vreg):
        if not self.c.stamps: return []
        return L(["s_memrealtime s[92:93]", "s_waitcnt lgkmcnt(0)", "v_writelane_b32 v%d, s92, %d" % (vreg, n)])
    def lds_signal(self, off, vz, vone, need=()):
        return [Need(*need), I("s_mov_b64 exec, 1", glue=True), I("ds_add_u32 v%d, v%d offset:%d" % (vz, vone, off), glue=True), I("s_mov_b64 exec, -1", glue=True)]
    def lds_poll_issue(self, off, vz, vt): return [I("ds_read_b32 v%d, v%d offset:%d" % (vt, vz, off))]
    def lds_poll_check(self, off, vz, vt, cnt=4):
        a = self.lab("lp"); b = self.lab("lr")
        self.slow += L(["%s:" % a, "s_add_u32 s%d, s%d, 1" % (sSPIN, sSPIN), "s_cmp_gt_u32 s%d, %d" % (sSPIN, self.c.spin), "s_cbranch_scc1 %s" % b,
                        "ds_read_b32 v%d, v%d offset:%d" % (vt, vz, off), "s_waitcnt lgkmcnt(0)", "v_cmp_gt_u32 vcc, %d, v%d" % (cnt, vt), "s_cbranch_vccnz %s" % a, "s_branch %s" % b])
        return [I("v_cmp_gt_u32 vcc, %d, v%d" % (cnt, vt)), I("s_cbranch_vccnz %s" % a, glue=True), I("%s:" % b, glue=True)]
    def lds_wait(self, off, vz, vt, cnt=4): return self.lds_poll_issue(off, vz, vt) + self.lds_poll_check(off, vz, vt, cnt)
    def g_poll_issue(self, vt, voff, srd, soff): return [I("buffer_load_dword v%d, v%d, %s, %s offen sc1" % (vt, voff, sr(srd, 4), soff))]
    def g_poll_check(self, vt, voff, srd, soff, cnt):
        a = self.lab("gp"); b = self.lab("gr")
        self.slow += L(["%s:" % a, "s_add_u32 s%d, s%d, 1" % (sSPIN, sSPIN), "s_cmp_gt_u32 s%d, %d" % (sSPIN, self.c.spin), "s_cbranch_scc1 %s" % b,
                        "buffer_load_dword v%d, v%d, %s, %s offen sc1" % (vt, voff, sr(srd, 4), soff), "s_waitcnt vmcnt(0)", "v_cmp_gt_u32 vcc, %d, v%d" % (cnt, vt), "s_cbranch_vccnz %s" % a, "s_branch %s" % b])
        return [I("v_cmp_gt_u32 vcc, %d, v%d" % (cnt, vt)), I("s_cbranch_vccnz %s" % a, glue=True), I("%s:" % b, glue=True)]
    def srd(self, d, p, nbytes): return L(["s_mov_b32 s%d, s%d" % (d, p), "s_mov_b32 s%d, s%d" % (d + 1, p + 1), "s_mov_b32 s%d, 0x%x" % (d + 2, nbytes), "s_mov_b32 s%d, 0x20000" % (d + 3)])

    def prologue(self):
        c = self.c; s = []; A = lambda t: s.extend(L(t))
        A("s_cmp_ge_u32 s2, 256"); A("s_cbranch_scc1 L_end")
        A("s_load_dwordx16 s[36:51], s[0:1], 0"); A("s_load_dwordx4 s[52:55], s[0:1], 64")
        A("v_lshrrev_b32 v1, 6, v0"); A("v_and_b32 v0, 63, v0"); A("v_readfirstlane_b32 s%d, v1" % sW)
        A("v_lshlrev_b32 v2, 2, v0"); A("v_and_b32 v2, 0x7c, v2"); A("v_add_u32 v2, %d, v2" % CNT); A("v_mov_b32 v3, 0"); A("ds_write_b32 v2, v3")
        t0, t1, t2 = sT[:3]
        A("s_and_b32 s%d, s2, 7" % t0); A("s_lshr_b32 s%d, s2, 3" % t1)
        if c.p1map == "sq":
            A("s_lshr_b32 s%d, s%d, 2" % (sI, t0)); A("s_lshl_b32 s%d, s%d, 3" % (sI, sI)); A("s_lshr_b32 s%d, s%d, 2" % (t2, t1)); A("s_add_u32 s%d, s%d, s%d" % (sI, sI, t2))
            A("s_and_b32 s%d, s%d, 3" % (sG, t0)); A("s_lshl_b32 s%d, s%d, 1" % (sG, sG)); A("s_and_b32 s%d, s%d, 1" % (t2, t1)); A("s_add_u32 s%d, s%d, s%d" % (sG, sG, t2))
            A("s_bfe_u32 s%d, s%d, 0x10001" % (sTY, t1))
            A("s_and_b32 s%d, s%d, 3" % (sROT, t1))
        elif c.p1map == "mid":
            A("s_lshr_b32 s%d, s%d, 1" % (sI, t0)); A("s_lshl_b32 s%d, s%d, 2" % (sI, sI)); A("s_lshr_b32 s%d, s%d, 3" % (t2, t1)); A("s_add_u32 s%d, s%d, s%d" % (sI, sI, t2))
            A("s_and_b32 s%d, s%d, 1" % (sG, t0)); A("s_lshl_b32 s%d, s%d, 2" % (sG, sG)); A("s_and_b32 s%d, s%d, 3" % (t2, t1)); A("s_add_u32 s%d, s%d, s%d" % (sG, sG, t2))
            A("s_bfe_u32 s%d, s%d, 0x10002" % (sTY, t1))
            A("s_and_b32 s%d, s%d, 3" % (sROT, t1))
        elif c.p1map == "row":
            A("s_lshl_b32 s%d, s%d, 1" % (sI, t0)); A("s_lshr_b32 s%d, s%d, 4" % (t2, t1)); A("s_add_u32 s%d, s%d, s%d" % (sI, sI, t2))
            A("s_and_b32 s%d, s%d, 7" % (sG, t1)); A("s_bfe_u32 s%d, s%d, 0x10003" % (sTY, t1))
            A("s_and_b32 s%d, s%d, 3" % (sROT, t1))
        if c.rot == 0: A("s_mov_b32 s%d, 0" % sROT)
        elif c.rot == 1: A("s_lshl_b32 s%d, s%d, 1" % (sROT, sROT))
        elif c.rot == 2:
            A("s_add_u32 s%d, s%d, s%d" % (sROT, sROT, sI)); A("s_and_b32 s%d, s%d, 3" % (sROT, sROT)); A("s_lshl_b32 s%d, s%d, 1" % (sROT, sROT))
        if c.p2map == "r4c8":
            A("s_lshl_b32 s%d, s%d, 2" % (sRT, t0)); A("s_lshr_b32 s%d, s%d, 3" % (t2, t1)); A("s_add_u32 s%d, s%d, s%d" % (sRT, sRT, t2)); A("s_and_b32 s%d, s%d, 7" % (sCG, t1))
        elif c.p2map == "r8c4":
            A("s_lshr_b32 s%d, s%d, 1" % (sRT, t0)); A("s_lshl_b32 s%d, s%d, 3" % (sRT, sRT)); A("s_lshr_b32 s%d, s%d, 2" % (t2, t1)); A("s_add_u32 s%d, s%d, s%d" % (sRT, sRT, t2))
            A("s_and_b32 s%d, s%d, 1" % (sCG, t0)); A("s_lshl_b32 s%d, s%d, 2" % (sCG, sCG)); A("s_and_b32 s%d, s%d, 3" % (t2, t1)); A("s_add_u32 s%d, s%d, s%d" % (sCG, sCG, t2))
        A("s_mov_b32 s%d, 0" % sSPIN)
        A("s_cmp_ge_u32 s%d, 4" % sW); A("s_cbranch_scc1 L_lwave")
        return s
    def srds(self):
        s = L("s_waitcnt lgkmcnt(0)")
        s += self.srd(S_X, KA + 0, 2048 * 1024) + self.srd(S_WS, 54, WS_BYTES) + self.srd(S_DBG, 52, 256) + self.srd(S_OUT, KA + 14, 2048 * 1024)
        return s

    vL16 = 1; vZ = 2; vONE = 3; vFLG = 4; vTR = 5; vPOLL = 9; vR = 10; vBA = 11; vTMP = 12; vST = 13; vINIT = 14; vFV = 15
    T0 = 16; BF = 64; ACC = (96, 112); X = 128
    def unit_decode(self, sU, srd, so_src, so_dst, so_flag):
        t0, t1, t2, t3, t4 = sT[:5]; s = []; A = lambda t: s.extend(L(t))
        A("s_lshr_b32 s%d, s%d, 3" % (t0, sU)); A("s_and_b32 s%d, s%d, 7" % (sU, sU))
        A("s_mul_i32 s%d, s%d, 144" % (t1, sU)); A("s_add_u32 s%d, s%d, s%d" % (t1, t1, t0))
        A("s_lshl_b32 s%d, s%d, 11" % (so_dst, t1)); A("s_add_u32 s%d, s%d, %d" % (so_dst, so_dst, W2T))
        A("s_lshl_b32 s%d, s%d, 2" % (so_flag, t1)); A("s_add_u32 s%d, s%d, %d" % (so_flag, so_flag, W2F))
        A("s_mul_i32 s%d, s%d, 1821" % (t1, t0)); A("s_lshr_b32 s%d, s%d, 16" % (t1, t1))
        A("s_mul_i32 s%d, s%d, 36" % (t2, t1)); A("s_sub_u32 s%d, s%d, s%d" % (t0, t0, t2))
        A("s_bfe_u32 s%d, s%d, 0x10001" % (t2, t0))
        A("s_lshr_b32 s%d, s%d, 2" % (t3, t0)); A("s_lshl_b32 s%d, s%d, 1" % (t3, t3))
        A("s_cmp_lt_u32 s%d, 24" % t0); A("s_cselect_b32 s%d, 4, 1" % t4); A("s_lshl_b32 s%d, s%d, s%d" % (t2, t2, t4))
        A("s_add_u32 s%d, s%d, s%d" % (t3, t3, t2)); A("s_and_b32 s%d, s%d, 1" % (t2, t0)); A("s_add_u32 s%d, s%d, s%d" % (t3, t3, t2))
        A("s_mul_i32 s%d, s%d, 28" % (t2, t1)); A("s_add_u32 s%d, s%d, s%d" % (t3, t3, t2))
        A("s_lshl_b32 s%d, s%d, 3" % (t1, t1)); A("s_add_u32 s%d, s%d, s%d" % (t1, t1, t0)); A("s_sub_u32 s%d, s%d, 28" % (t1, t1))
        A("s_cmp_lt_u32 s%d, 28" % t0); A("s_cselect_b32 s%d, s%d, s%d" % (t3, t3, t1)); A("s_cselect_b32 s%d, 7, 2" % (srd + 2)); A("s_lshl_b32 s%d, s%d, 18" % (srd + 2, srd + 2))
        A("s_lshl_b32 s%d, s%d, 14" % (t3, t3)); A("s_lshl_b32 s%d, s%d, 7" % (sU, sU)); A("s_add_u32 s%d, s%d, s%d" % (so_src, t3, sU))
        return s
    def unit_srd(self, srd):
        return L(["s_cmp_eq_u32 s%d, 0x80000" % (srd + 2), "s_cselect_b32 s%d, s%d, s%d" % (srd, KA + 4, KA + 12), "s_cselect_b32 s%d, s%d, s%d" % (srd + 1, KA + 5, KA + 13), "s_mov_b32 s%d, 0x20000" % (srd + 3)])

    def p1_head(self):
        c = self.c; s = []; A = lambda t, **k: s.extend([I(t, **k)] if k else L(t))
        X = self.X; T0 = self.T0
        u1, u1s, u1d, u1f, u2, u2s, u2d, u2f, sXL, sHAS2, sACT, sAF = sA[:12]
        self.sACT = sACT; self.sAF = sAF
        vXG = [16, 17, 18, 19]; vUG = [20, 21]; vXR = [22, 23, 24, 25]; vUR = [26, 27]; S1 = [28, 29]; S2 = [30, 31]
        SEL = 32; NEG = 40; UW = 56
        D3 = self.BF
        A("s_setprio 2")
        if c.stamps: A("v_mov_b32 v%d, 0" % self.vST)
        A("v_lshlrev_b32 v%d, 4, v0" % self.vL16)
        A("v_lshrrev_b32 v70, 3, v0"); A("v_and_b32 v71, 7, v0")
        A("v_lshrrev_b32 v72, 1, v70"); A("v_xor_b32 v72, v72, v71")
        A("s_lshl_b32 s%d, s%d, 7" % (sT[0], sI)); A("s_lshl_b32 s%d, s%d, 5" % (sT[1], sW)); A("s_add_u32 s%d, s%d, s%d" % (sT[0], sT[0], sT[1]))
        A("v_add_u32 v73, s%d, v70" % sT[0]); A("v_lshlrev_b32 v73, 10, v73")
        A("v_lshl_add_u32 v%d, v72, 4, v73" % vXG[0])
        A("v_xor_b32 v74, 64, v%d" % vXG[0])
        A("v_add_u32 v%d, %d, v74" % (vXG[1], 7168)); A("v_add_u32 v%d, %d, v%d" % (vXG[2], 2 * 7168, vXG[0])); A("v_add_u32 v%d, %d, v74" % (vXG[3], 3 * 7168))
        A("v_bfe_u32 v72, v70, 1, 1"); A("v_lshlrev_b32 v72, 2, v72"); A("v_xor_b32 v72, v72, v71"); A("v_lshlrev_b32 v72, 4, v72")
        A("v_lshl_add_u32 v%d, v70, 10, v72" % vUG[0]); A("v_add_u32 v%d, 7168, v%d" % (vUG[1], vUG[0]))
        A("s_lshl_b32 s%d, s2, 2" % u1); A("s_add_u32 s%d, s%d, s%d" % (u1, u1, sW))
        s += self.unit_decode(u1, S_U1, u1s, u1d, u1f)
        A("s_lshl_b32 s%d, s%d, 3" % (u2, sI)); A("s_add_u32 s%d, s%d, s%d" % (u2, u2, sG)); A("s_add_u32 s%d, s%d, 1024" % (u2, u2))
        s += self.unit_decode(u2, S_U2, u2s, u2d, u2f)
        A("s_or_b32 s%d, s%d, s%d" % (sHAS2, sTY, sW))
        A("s_mul_i32 s%d, s%d, %d" % (sXL, sW, XW)); A("s_add_u32 s%d, s%d, %d" % (sXL, sXL, XB))
        s += self.srds()
        s += self.unit_srd(S_U1) + self.unit_srd(S_U2)
        l2 = self.lab("skipu")
        A("s_cmp_lg_u32 s%d, 0" % sHAS2); A("s_cbranch_scc1 %s" % l2)
        s += maybe([I("s_mov_b32 m0, %d" % STG2)] + [I("buffer_load_dwordx4 v%d, %s, s%d offen offset:%d lds" % (vUG[g], sr(S_U2, 4), u2s, 1024 * g), tag="u2raw%d" % g) for g in range(2)])
        A("%s:" % l2)
        A("s_lshl_b32 s%d, s%d, 11" % (sT[0], sW)); A("s_add_u32 m0, s%d, %d" % (sT[0], STG))
        for g in range(2): A("buffer_load_dwordx4 v%d, %s, s%d offen offset:%d lds" % (vUG[g], sr(S_U1, 4), u1s, 1024 * g), tag="u1raw%d" % g)
        def xdma(ch):
            o = L(["s_add_u32 s%d, s%d, %d" % (sT[0], sROT, ch), "s_and_b32 s%d, s%d, 7" % (sT[0], sT[0]), "s_add_u32 m0, s%d, %d" % (sXL, (ch % 5) * 4096), "s_lshl_b32 s%d, s%d, 7" % (sT[0], sT[0])])
            for g in range(4): o.append(I("buffer_load_dwordx4 v%d, %s, s%d offen offset:%d lds" % (vXG[g], sr(S_X, 4), sT[0], 1024 * g), tag="x%d_%d" % (ch, g)))
            return o
        s += xdma(0)
        A("s_barrier")
        for ch in range(1, 5): s += xdma(ch)
        s += self.stamp(0, self.vST)
        A("v_mov_b32 v%d, %d" % (self.vZ, CNT)); A("v_mov_b32 v%d, 1" % self.vONE)
        A("v_cmp_eq_u32 vcc, 0, v0"); A("v_mov_b32 v75, 0x%x" % OOB); A("v_cndmask_b32 v%d, v75, 0, vcc" % self.vFLG)
        A("v_and_b32 v70, 31, v0"); A("v_lshrrev_b32 v71, 5, v0")
        A("v_cmp_gt_u32 s[%d:%d], 16, v70" % (sM16, sM16 + 1))
        A("v_bfe_u32 v72, v70, 1, 3"); A("v_xor_b32 v72, v72, v71"); A("v_lshlrev_b32 v72, 4, v72"); A("v_lshl_add_u32 v72, v70, 7, v72")
        A("v_add_u32 v%d, s%d, v72" % (vXR[0], sXL))
        for k in range(1, 4): A("v_xor_b32 v%d, %d, v%d" % (vXR[k], 32 * k, vXR[0]))
        A("v_bfe_u32 v72, v0, 2, 2"); A("v_bfe_u32 v73, v0, 3, 1"); A("v_lshlrev_b32 v73, 6, v73"); A("v_lshl_add_u32 v73, v72, 7, v73")
        A("v_bfe_u32 v72, v0, 4, 1"); A("v_lshl_add_u32 v73, v72, 5, v73"); A("v_and_b32 v72, 3, v0"); A("v_lshl_add_u32 v73, v72, 3, v73")
        A("v_lshl_add_u32 v%d, v71, 10, v73" % self.vTR)
        A("v_xor_b32 v%d, 64, v%d" % (self.vTR + 1, self.vTR))
        A("v_add_u32 v%d, %d, v%d" % (self.vTR + 2, R1, self.vTR)); A("v_add_u32 v%d, %d, v%d" % (self.vTR + 3, R1, self.vTR + 1))
        A("v_lshl_add_u32 v73, v71, 9, v73")
        A("s_lshl_b32 s%d, s%d, 11" % (sT[0], sW)); A("s_add_u32 s%d, s%d, %d" % (sT[0], sT[0], STG))
        A("v_add_u32 v%d, s%d, v73" % (vUR[0], sT[0])); A("v_xor_b32 v%d, 64, v%d" % (vUR[1], vUR[0]))
        A("v_lshlrev_b32 v%d, 4, v71" % self.vBA)
        A("v_lshrrev_b32 v72, 3, v70"); A("v_lshlrev_b32 v72, 1, v72"); A("v_bfe_u32 v73, v70, 1, 1"); A("v_add_u32 v72, v72, v73")
        A("v_bfe_u32 v73, v70, 2, 1"); A("v_xor_b32 v73, v73, v71"); A("v_lshl_add_u32 v72, v73, 4, v72")
        A("v_and_b32 v73, 1, v70"); A("v_lshlrev_b32 v73, 4, v73"); A("v_mov_b32 v74, 0x3f80"); A("v_lshlrev_b32 v73, v73, v74")
        for d in range(8):
            A("v_cmp_eq_u32 vcc, %d, v72" % d); A("v_cndmask_b32 v%d, 0, v73, vcc" % (SEL + d))
        for r in S1 + S2: A("v_mov_b32 v%d, 0" % r)
        A("s_mov_b32 s%d, 0x3f803f80" % sC0)
        t0, t1, t2, t3 = sT[:4]
        A("s_lshl_b32 s%d, s%d, 1" % (t0, sI)); A("s_lshr_b32 s%d, s%d, 1" % (t1, sW)); A("s_add_u32 s%d, s%d, s%d" % (t0, t0, t1))
        A("s_lshr_b32 s%d, s%d, 1" % (t1, sG)); A("s_and_b32 s%d, s%d, 1" % (t2, sG)); A("s_and_b32 s%d, s%d, 1" % (t3, sW))
        A("s_lshl_b32 s%d, s%d, 7" % (sAF, t0)); A("s_lshl_b32 s%d, s%d, 5" % (sACT, t1)); A("s_add_u32 s%d, s%d, s%d" % (sAF, sAF, sACT))
        A("s_lshl_b32 s%d, s%d, 3" % (sACT, t2)); A("s_add_u32 s%d, s%d, s%d" % (sAF, sAF, sACT)); A("s_lshl_b32 s%d, s%d, 2" % (sACT, t3)); A("s_add_u32 s%d, s%d, s%d" % (sAF, sAF, sACT))
        A("s_cmp_eq_u32 s%d, 0" % sTY); A("s_cselect_b32 s%d, 16, 0" % sACT); A("s_add_u32 s%d, s%d, s%d" % (sAF, sAF, sACT))
        A("s_mul_i32 s%d, s%d, 144" % (t0, t0)); A("s_mul_i32 s%d, s%d, 36" % (t1, t1)); A("s_add_u32 s%d, s%d, s%d" % (t0, t0, t1))
        A("s_cmp_eq_u32 s%d, 0" % sTY); A("s_cselect_b32 s%d, 2, 1" % t1); A("s_lshl_b32 s%d, s%d, s%d" % (t2, t2, t1)); A("s_add_u32 s%d, s%d, s%d" % (t0, t0, t2))
        A("s_cmp_eq_u32 s%d, 0" % sTY); A("s_cselect_b32 s%d, 28, 0" % t1); A("s_add_u32 s%d, s%d, s%d" % (t0, t0, t1))
        A("s_lshl_b32 s%d, s%d, 1" % (t0, t0)); A("s_add_u32 s%d, s%d, s%d" % (t0, t0, t3)); A("s_lshl_b32 s%d, s%d, 10" % (t0, t0)); A("s_add_u32 s%d, s%d, %d" % (sACT, t0, ACT))
        def unit(stg_off, dst, tags, nm):
            o = []
            for ch in range(2):
                for q in range(2): o.append(I("ds_read_b64_tr_b16 v[%d:%d], v%d offset:%d" % (UW + 4 * ch + 2 * q, UW + 4 * ch + 2 * q + 1, vUR[ch], stg_off + 1024 * q), need=tags))
            for ch in range(2): o.append(I("buffer_store_dwordx4 v[%d:%d], v%d, %s, s%d offen offset:%d sc1" % (UW + 4 * ch, UW + 4 * ch + 3, self.vL16, sr(S_WS, 4), dst, 1024 * ch), tag="%s_%d" % (nm, ch)))
            return o
        s += [Need("u1raw0", "u1raw1")]
        l3 = self.lab("skipu")
        A("s_cmp_lg_u32 s%d, 0" % sHAS2); A("s_cbranch_scc1 %s" % l3)
        s += maybe(unit(STG2 - STG, u2d, [], "u2st") + L("s_nop 1"))
        A("%s:" % l3)
        s += unit(0, u1d, [], "u1st")
        for ch in range(8):
            for k in range(4): A("ds_read_b128 %s, v%d offset:%d" % (vr(X + 16 * ch + 4 * k, 4), vXR[k], (ch % 5) * 4096), need=["x%d_%d" % (ch, g) for g in range(4)])
            if ch < 3:
                s.append(Need(regs=[vr(X + 16 * ch, 16)])); s += xdma(ch + 5)
            if ch == 3: s += self.g_poll_issue(self.vINIT, self.vFLG, S_DBG, "0")
            if ch == 7:
                s.append(Need(regs=[vr(X + 16 * ch, 16)])); s += self.lds_signal(C_FREEX, self.vZ, self.vONE)
            for d in range(16):
                A("v_dot2c_f32_bf16 v%d, s%d, v%d" % (S1[d % 2], sC0, X + 16 * ch + d)); A("v_dot2c_f32_bf16 v%d, v%d, v%d" % (S2[d % 2], X + 16 * ch + d, X + 16 * ch + d))
        s += self.stamp(1, self.vST)
        A("v_add_f32 v%d, v%d, v%d" % (S1[0], S1[0], S1[1])); A("v_add_f32 v%d, v%d, v%d" % (S2[0], S2[0], S2[1]))
        A("v_mov_b32 v%d, v%d" % (S1[1], S1[0])); A("v_mov_b32 v%d, v%d" % (S2[1], S2[0]))
        A("v_permlane32_swap_b32 v%d, v%d" % (S1[0], S1[1])); A("v_permlane32_swap_b32 v%d, v%d" % (S2[0], S2[1]))
        A("v_add_f32 v%d, v%d, v%d" % (S1[0], S1[0], S1[1])); A("v_add_f32 v%d, v%d, v%d" % (S2[0], S2[0], S2[1]))
        for r in range(16): A("v_mul_f32 v%d, 0xbb000000, v%d" % (NEG + r, S1[0]))
        side = L(["v_mul_f32 v%d, 0x3b000000, v%d" % (S2[0], S2[0]), "v_fma_f32 v%d, -v%d, v%d, v%d" % (S2[0], NEG, NEG, S2[0]), "v_max_f32 v%d, 0, v%d" % (S2[0], S2[0]),
                  "v_add_f32 v%d, 0x%x, v%d" % (S2[0], EPS5, S2[0]), "v_rsq_f32 v%d, v%d" % (S2[0], S2[0]), "s_nop 0", "v_mul_f32 v%d, 0x%x, v%d" % (self.vR, LOG2E, S2[0])])
        Db = [self.ACC[0], self.ACC[1], D3]
        groups = []
        for p in range(18):
            for hf in range(2):
                g = []
                if p < 16:
                    D = Db[p % 3]
                    g.append(I("v_mfma_f32_32x32x16_bf16 %s, %s, %s, %s" % (vr(D, 16), vr(SEL + 4 * hf, 4), vr(X + 8 * p + 4 * hf, 4), vr(NEG, 16) if hf == 0 else vr(D, 16))))
                if p >= 2:
                    D = Db[(p - 2) % 3]
                    for k in range(4): g.append(I("v_cvt_pk_bf16_f32 v%d, v%d, v%d" % (X + 8 * (p - 2) + 4 * hf + k, D + 8 * hf + 2 * k, D + 8 * hf + 2 * k + 1)))
                groups.append(g)
        s += interleave(groups, side, 0, 4)
        A("v_readfirstlane_b32 s%d, v%d" % (sT[0], self.vINIT))
        a = self.lab("init"); b = self.lab("initr")
        A("s_cmp_eq_u32 s%d, 0" % sT[0]); A("s_cbranch_scc1 %s" % a); A("%s:" % b)
        self.slow += L(["%s:" % a, "s_add_u32 s%d, s%d, 1" % (sSPIN, sSPIN), "s_cmp_gt_u32 s%d, %d" % (sSPIN, c.spin), "s_cbranch_scc1 %s" % b,
                        "buffer_load_dword v%d, v%d, %s, 0 offen sc1" % (self.vINIT, self.vFLG, sr(S_DBG, 4)), "s_waitcnt vmcnt(0)", "v_readfirstlane_b32 s%d, v%d" % (sT[0], self.vINIT), "s_nop 0",
                        "s_cmp_eq_u32 s%d, 0" % sT[0], "s_cbranch_scc1 %s" % a, "s_branch %s" % b])
        A("buffer_store_dword v%d, v%d, %s, s%d offen sc1" % (self.vONE, self.vFLG, sr(S_WS, 4), u1f), need=["u1st_0", "u1st_1"])
        l4 = self.lab("skipu")
        A("s_cmp_lg_u32 s%d, 0" % sHAS2); A("s_cbranch_scc1 %s" % l4)
        A("buffer_store_dword v%d, v%d, %s, s%d offen sc1" % (self.vONE, self.vFLG, sr(S_WS, 4), u2f), maybe=True)
        A("%s:" % l4)
        s += self.stamp(2, self.vST)
        A("s_cmp_eq_u32 s%d, 0" % sTY); A("s_cbranch_scc1 L_p1a")
        return s

    def tiles(self, specs):
        X = self.X; BF = self.BF; n = len(specs); s = []
        def rd(t, k):
            sl = BF + 4 * ((32 * t + k) % 8)
            return [I("ds_read_b64_tr_b16 v[%d:%d], v%d offset:%d" % (sl + 2 * q, sl + 2 * q + 1, specs[t]["tr"], 2048 * k + 512 * q)) for q in range(2)]
        s += self.lds_wait(C_FULL + 0, self.vZ, self.vPOLL)
        s += self.stamp(3, self.vST)
        for k in range(7): s += rd(0, k)
        for t, sp in enumerate(specs):
            acc = self.ACC[t % 2]; groups = []
            for k in range(32):
                g = []; sl = BF + 4 * ((32 * t + k) % 8)
                if k % 4 == 0: g.append(Need(regs=[vr(BF + 4 * ((32 * t + k + 3) % 8), 4)]))
                if k == 28 and sp["last"] and sp.get("free") is not None: g += self.lds_signal(C_FREE + 4 * sp["free"], self.vZ, self.vONE)
                a, b = (vr(X + 4 * k, 4), vr(sl, 4)) if sp["swap"] else (vr(sl, 4), vr(X + 4 * k, 4))
                g.append(I("v_mfma_f32_32x32x16_bf16 %s, %s, %s, %s" % (vr(acc, 16), a, b, "0" if k == 0 else vr(acc, 16))))
                nxt = t + 1 < n and specs[t + 1]["blk"] != sp["blk"]
                if nxt and k == 20: g += self.lds_poll_issue(C_FULL + 4 * specs[t + 1]["blk"], self.vZ, self.vPOLL)
                if nxt and k == 24: g += self.lds_poll_check(C_FULL + 4 * specs[t + 1]["blk"], self.vZ, self.vPOLL)
                if k + 7 < 32: g += rd(t, k + 7)
                elif t + 1 < n: g += rd(t + 1, k + 7 - 32)
                groups.append(g)
            side = specs[t - 1]["epi"] if t > 0 else sp.get("pre", [])
            s += interleave(groups, side, 2 if t > 0 else 0, 32)
            s += self.stamp(4 + t, self.vST)
        s += specs[-1]["epi"]
        return s

    def publish(self, val, need):
        return [I("v_mov_b32 v%d, %d" % (self.vFV, val)), I("buffer_store_dword v%d, v%d, %s, s%d offen sc1" % (self.vFV, self.vFLG, sr(S_WS, 4), self.sAF), need=need)]

    def p1_m(self):
        s = []; A = lambda t, **k: s.extend([I(t, **k)] if k else L(t))
        a0 = 16; u0 = 32; e0 = 36; o0 = 40; vB7 = 48; vT7 = 49
        A("v_add_u32 v%d, %d, v%d" % (self.vBA, BIAS, self.vBA))
        A("s_and_b32 s%d, s%d, 1" % (sT[0], sG)); A("s_lshl_b32 s%d, s%d, 7" % (sT[1], sT[0])); A("v_add_u32 v%d, s%d, v%d" % (vB7, sT[1], self.vBA))
        A("s_lshl_b32 s%d, s%d, 6" % (sT[1], sT[0])); A("v_xor_b32 v%d, s%d, v%d" % (vT7, sT[1], self.vTR + 2))
        specs = []
        for t in range(7):
            acc = self.ACC[t % 2]; e = []
            for q in range(4): e.append(I("ds_read_b128 %s, v%d offset:%d" % (vr(a0 + 4 * q, 4), self.vBA if t < 6 else vB7, 128 * t + 32 * q)))
            e.append(I("s_add_u32 s%d, s%d, %d" % (sT[2], self.sACT, 8192 * t)))
            for q in range(4):
                rr = range(4)
                e += [I("v_fmac_f32 v%d, v%d, v%d" % (a0 + 4 * q + r, acc + 4 * q + r, self.vR)) for r in rr]
                e += [I("v_exp_f32 v%d, v%d" % (u0 + r, a0 + 4 * q + r)) for r in rr]
                e += [I("v_fma_f32 v%d, v%d, -0.5, -1.0" % (e0 + r, u0 + r)) for r in rr]
                e += [I("v_fma_f32 v%d, v%d, v%d, -1.0" % (e0 + r, u0 + r, e0 + r)) for r in rr]
                e += [I("v_rcp_f32 v%d, v%d" % (e0 + r, e0 + r)) for r in rr]
                e += [I("v_fmac_f32 v%d, v%d, v%d" % (a0 + 4 * q + r, a0 + 4 * q + r, e0 + r)) for r in rr]
                e += [I("v_cvt_pk_bf16_f32 v%d, v%d, v%d" % (o0 + 2 * q + k, a0 + 4 * q + 2 * k, a0 + 4 * q + 2 * k + 1)) for k in range(2)]
                if q == 3 and t > 0: e += self.publish(t, ["act%d_0" % (t - 1), "act%d_1" % (t - 1)])
                if q % 2 == 1: e.append(I("buffer_store_dwordx4 %s, v%d, %s, s%d offen offset:%d sc1" % (vr(o0 + 4 * (q // 2), 4), self.vL16, sr(S_WS, 4), sT[2], 2048 * (q // 2)), tag="act%d_%d" % (t, q // 2)))
            blk = t // 2
            specs.append(dict(tr=(self.vTR + 2 * (blk % 2) + t % 2) if t < 6 else vT7, swap=False, blk=blk, last=(t % 2 == 1), free=blk if blk < 2 else None, epi=e))
        s += self.tiles(specs)
        s += self.publish(7, ["act6_0", "act6_1"])
        s += self.stamp(11, self.vST)
        A("s_branch L_p1_done")
        return s

    def p1_a(self):
        c = self.c; s = []; A = lambda t, **k: s.extend([I(t, **k)] if k else L(t))
        X = self.X
        R16 = 16; PK = [32, 40]; VV = 48; a0 = 56; u0 = 60; ONES = 48
        PQ = [16, 24]; vSP = 12; vZPw = 14
        sKS, sKZ, sKF, sKFr = sA[12:16]
        A("L_p1a:")
        A("s_mov_b32 s%d, 0x%x" % (sC0, LN2)); A("s_mov_b32 s%d, 0x%x" % (sC1, EPS6))
        A("s_lshl_b32 s%d, s%d, 7" % (sT[0], sW)); A("s_add_u32 s%d, s%d, %d" % (sT[0], sT[0], RTAB))
        A("v_and_b32 v56, 31, v0"); A("v_lshl_add_u32 v57, v56, 2, s%d" % sT[0]); A("ds_write_b32 v57, v%d" % self.vR)
        A("v_add_u32 v57, s%d, v%d" % (sT[0], self.vBA))
        for q in range(4): A("ds_read_b128 %s, v57 offset:%d" % (vr(R16 + 4 * q, 4), 32 * q))
        pre = []
        P = lambda t, **k: pre.extend([I(t, **k)] if k else L(t))
        for r in range(4): P("v_mov_b32 v%d, 0x3f803f80" % (ONES + r))
        P("s_lshl_b32 s%d, s%d, 12" % (sT[0], sW)); P("s_add_u32 s%d, s%d, %d" % (sT[0], sT[0], SP)); P("v_add_u32 v%d, s%d, v%d" % (vSP, sT[0], self.vL16))
        P("s_lshl_b32 s%d, s%d, 8" % (sT[0], sW)); P("s_add_u32 s%d, s%d, %d" % (sT[0], sT[0], ZP)); P("v_lshl_add_u32 v%d, v56, 2, s%d" % (vZPw, sT[0]))
        P("s_lshl_b32 s%d, s%d, 2" % (sKS, sG)); P("s_add_u32 s%d, s%d, s%d" % (sKS, sKS, sW)); P("s_lshl_b32 s%d, s%d, 14" % (sKS, sKS)); P("s_add_u32 s%d, s%d, %d" % (sKS, sKS, KVS))
        P("s_lshl_b32 s%d, s%d, 12" % (sKZ, sG)); P("s_add_u32 s%d, s%d, %d" % (sKZ, sKZ, KVZ))
        P("s_lshl_b32 s%d, s%d, 8" % (sKFr, sG)); P("s_add_u32 s%d, s%d, %d" % (sKFr, sKFr, KVF))
        P("s_lshl_b32 s%d, s%d, 2" % (sKF, sI)); P("s_add_u32 s%d, s%d, s%d" % (sKF, sKF, sW)); P("s_lshl_b32 s%d, s%d, 2" % (sKF, sKF)); P("s_add_u32 s%d, s%d, s%d" % (sKF, sKF, sKFr))
        def phi(acc, dst, scale):
            e = []
            for q in range(4):
                rr = range(4)
                e += [I("v_mul_f32 v%d, v%d, v%d" % (a0 + r, acc + 4 * q + r, scale(4 * q + r))) for r in rr]
                e += [I("v_exp_f32 v%d, v%d clamp" % (u0 + r, a0 + r)) for r in rr]
                e += [I("v_add_f32 v%d, s%d, v%d" % (u0 + r, sC1, u0 + r)) for r in rr]
                e += [I("v_fma_f32 v%d, v%d, s%d, v%d" % (a0 + r, a0 + r, sC0, u0 + r)) for r in rr]
                e += [I("v_max_f32 v%d, v%d, v%d" % (a0 + r, a0 + r, u0 + r)) for r in rr]
                e += [I("v_cvt_pk_bf16_f32 v%d, v%d, v%d" % (dst + 2 * q + k, a0 + 2 * k, a0 + 2 * k + 1)) for k in range(2)]
            return e
        pad = lambda n: [I("s_nop 0", raw=True) for _ in range(n)]
        specs = []
        for u in range(2):
            acc = self.ACC[u]
            e = phi(acc, PK[u], lambda r: R16 + r)
            e += [I("v_mfma_f32_32x32x16_bf16 %s, %s, %s, %s" % (vr(acc, 16), vr(ONES, 4), vr(PK[u] + 4 * k, 4), "0" if k == 0 else vr(acc, 16))) for k in range(2)]
            e += pad(12)
            e.append(I("ds_write_b32 v%d, v%d offset:%d" % (vZPw, acc, 128 * u), tag="zp%d" % u))
            e += pad(10)
            specs.append(dict(tr=self.vTR + u, swap=True, blk=0, last=(u == 1), free=0, epi=e, pre=pre))
        for u in range(2):
            acc = self.ACC[u]; e = []
            for q in range(4):
                e += [I("v_mul_f32 v%d, v%d, v%d" % (a0 + r, acc + 4 * q + r, R16 + 4 * q + r)) for r in range(4)]
                e += [I("v_cvt_pk_bf16_f32 v%d, v%d, v%d" % (VV + 2 * q + k, a0 + 2 * k, a0 + 2 * k + 1)) for k in range(2)]
            e += [I("v_mfma_f32_32x32x16_bf16 %s, %s, %s, %s" % (vr(acc, 16), vr(PK[u] + 4 * k, 4), vr(VV + 4 * k, 4), "0" if k == 0 else vr(acc, 16))) for k in range(2)]
            e += pad(12)
            e += [I("v_cndmask_b32 v%d, v%d, v%d, s[%d:%d]" % (a0 + r, acc + 8 + r, acc + r, sM16, sM16 + 1)) for r in range(8)]
            e += [I("ds_write_b128 v%d, %s offset:%d" % (vSP, vr(a0 + 4 * k, 4), 2048 * u + 1024 * k), tag="sp%d_%d" % (u, k)) for k in range(2)]
            if u == 1:
                e += self.lds_signal(C_KVP, self.vZ, self.vONE, need=["sp1_0", "sp1_1"])
                e += pad(12)
                KQ = 32
                e += self.lds_wait(C_KVP, self.vZ, self.vFV)
                e += L(["s_lshl_b32 s%d, s%d, 10" % (sT[0], sW), "s_add_u32 s%d, s%d, %d" % (sT[0], sT[0], SP), "v_add_u32 v%d, s%d, v%d" % (vSP, sT[0], self.vL16),
                        "v_lshlrev_b32 v%d, 2, v0" % vZPw, "v_add_u32 v%d, %d, v%d" % (a0, ZP, vZPw)])
                e += [I("ds_read_b128 %s, v%d offset:%d" % (vr(KQ + 4 * k, 4), vSP, 4096 * k)) for k in range(4)]
                e += [I("ds_read_b32 v%d, v%d offset:%d" % (u0 + k, a0, 256 * k)) for k in range(4)]
                e += L(["s_lshl_b32 s%d, s%d, 10" % (sT[0], sI), "s_add_u32 s%d, s%d, s%d" % (sT[0], sT[0], sKS),
                        "s_lshl_b32 s%d, s%d, 8" % (sT[1], sI), "s_add_u32 s%d, s%d, s%d" % (sT[1], sT[1], sKZ)])
                e += [I("v_add_f32 v%d, v%d, v%d" % (KQ + r, KQ + r, KQ + 4 + r)) for r in range(4)]
                e += [I("v_add_f32 v%d, v%d, v%d" % (KQ + 8 + r, KQ + 8 + r, KQ + 12 + r)) for r in range(4)]
                e += [I("v_add_f32 v%d, v%d, v%d" % (KQ + r, KQ + r, KQ + 8 + r)) for r in range(4)]
                e += L(["v_add_f32 v%d, v%d, v%d" % (u0, u0, u0 + 1), "v_add_f32 v%d, v%d, v%d" % (u0 + 2, u0 + 2, u0 + 3), "v_add_f32 v%d, v%d, v%d" % (u0, u0, u0 + 2)])
                lz = self.lab("skipz")
                e += [I("s_cmp_lg_u32 s%d, 0" % sW), I("s_cbranch_scc1 %s" % lz, glue=True),
                      I("buffer_store_dword v%d, v%d, %s, s%d offen sc1" % (u0, vZPw, sr(S_WS, 4), sT[1]), tag="kvz", maybe=True, glue=True), I("%s:" % lz, glue=True)]
                e.append(I("buffer_store_dwordx4 %s, v%d, %s, s%d offen sc1" % (vr(KQ, 4), self.vL16, sr(S_WS, 4), sT[0]), tag="kvs"))
            else: e += pad(40)
            specs.append(dict(tr=self.vTR + 2 + u, swap=True, blk=1, last=(u == 1), free=None, epi=e))
        for u in range(2):
            acc = self.ACC[u]
            e = phi(acc, PQ[u], lambda r: self.vR)
            if u == 0: e.append(I("buffer_store_dword v%d, v%d, %s, s%d offen sc1" % (self.vONE, self.vFLG, sr(S_WS, 4), sKF), need=["kvs", "kvz"]))
            else: e = self.g_poll_issue(self.vPOLL, vZPw, S_WS, "s%d" % sKFr) + e
            specs.append(dict(tr=self.vTR + u, swap=False, blk=2, last=(u == 1), free=None, epi=e))
        s += self.tiles(specs)
        s += self.g_poll_check(self.vPOLL, vZPw, S_WS, "s%d" % sKFr, 1)
        s += self.stamp(10, self.vST)
        G = X; ZG = X + 64
        lz = self.lab("skipz")
        A("s_cmp_lg_u32 s%d, 0" % sW); A("s_cbranch_scc1 %s" % lz)
        s += maybe([I("buffer_load_dwordx4 %s, v%d, %s, s%d offen offset:%d sc1" % (vr(ZG + 4 * k, 4), self.vL16, sr(S_WS, 4), sKZ, 1024 * k)) for k in range(4)])
        A("%s:" % lz)
        for k in range(16):
            if k % 4 == 0 and k: A("s_add_u32 s%d, s%d, 4096" % (sKS, sKS))
            A("buffer_load_dwordx4 %s, v%d, %s, s%d offen offset:%d sc1" % (vr(G + 4 * k, 4), self.vL16, sr(S_WS, 4), sKS, 1024 * (k % 4)))
        vSRw, vSRr, vZRr, vZRw = 32, 33, 34, 35
        A("v_lshlrev_b32 v%d, 3, v0" % vSRr); A("v_add_u32 v%d, %d, v%d" % (vSRr, SR, vSRr)); A("s_lshl_b32 s%d, s%d, 9" % (sT[0], sW)); A("v_add_u32 v%d, s%d, v%d" % (vSRw, sT[0], vSRr))
        A("v_add_u32 v%d, %d, v%d" % (vZRw, ZR, self.vL16))
        A("v_cndmask_b32 v%d, 0, 64, s[%d:%d]" % (vZRr, sM16, sM16 + 1)); A("v_add_u32 v%d, v%d, v%d" % (vZRr, vZRr, self.vBA)); A("v_add_u32 v%d, %d, v%d" % (vZRr, ZR, vZRr))
        lz = self.lab("skipz")
        s.append(Need(regs=[vr(G, 4)]))
        A("s_cmp_lg_u32 s%d, 0" % sW); A("s_cbranch_scc1 %s" % lz)
        z = []
        for k in (1, 2, 3): z += [I("v_add_f32 v%d, v%d, v%d" % (ZG + r, ZG + r, ZG + 4 * k + r)) for r in range(4)]
        for sw in ("32", "16"):
            z += [I("v_mov_b32 v%d, v%d" % (ZG + 4 + r, ZG + r)) for r in range(4)]
            z += [I("v_permlane%s_swap_b32 v%d, v%d" % (sw, ZG + r, ZG + 4 + r)) for r in range(4)]
            z += [I("v_add_f32 v%d, v%d, v%d" % (ZG + r, ZG + r, ZG + 4 + r)) for r in range(4)]
        z += L(["s_mov_b64 exec, 0xffff", "ds_write_b128 v%d, %s" % (vZRw, vr(ZG, 4)), "s_mov_b64 exec, -1"])
        s += maybe(z)
        A("%s:" % lz)
        for k in range(1, 16):
            b = 0 if k < 2 else (k % 2) * 4
            if k == 1: continue
            for r in range(4): A("v_add_f32 v%d, v%d, v%d" % (G + b + r, G + b + r, G + 4 * k + r))
        for r in range(4): A("v_add_f32 v%d, v%d, v%d" % (G + r, G + r, G + 4 + r))
        for k in range(2): A("v_cvt_pk_bf16_f32 v%d, v%d, v%d" % (G + 8 + k, G + 2 * k, G + 2 * k + 1))
        A("ds_write_b64 v%d, %s" % (vSRw, vr(G + 8, 2)))
        A("s_waitcnt lgkmcnt(0)")
        s += self.lds_signal(C_KVR, self.vZ, self.vONE)
        s += self.lds_wait(C_KVR, self.vZ, self.vPOLL)
        SB = X; ZF = X + 8; ZB = X + 24; PH = X + 32; DO = X + 48
        for k in range(4): A("ds_read_b64 %s, v%d offset:%d" % (vr(SB + 2 * k, 2), vSRr, 512 * k))
        for u in range(2):
            for q in range(2): A("ds_read_b128 %s, v%d offset:%d" % (vr(ZF + 8 * u + 4 * q, 4), vZRr, 128 * u + 32 * q))
        for k in range(8): A("v_cvt_pk_bf16_f32 v%d, v%d, v%d" % (ZB + k, ZF + 2 * k, ZF + 2 * k + 1))
        for u in range(2):
            for k in range(4): A("v_cndmask_b32 v%d, v%d, v%d, s[%d:%d]" % (PH + 8 * u + k, ZB + 4 * u + k, SB + 4 * u + k, sM16, sM16 + 1))
            for k in range(4): A("v_cndmask_b32 v%d, v%d, v%d, s[%d:%d]" % (PH + 8 * u + 4 + k, SB + 4 * u + k, ZB + 4 * u + k, sM16, sM16 + 1))
        for hd in range(4): A("v_mfma_f32_32x32x16_bf16 %s, %s, %s, 0" % (vr(DO + 16 * hd, 16), vr(PH + 4 * hd, 4), vr(PQ[0] + 4 * hd, 4)))
        A("s_add_u32 s%d, s%d, 4096" % (sT[0], self.sACT))
        OO = 36
        for hd in range(4):
            D = DO + 16 * hd; num = D + (0 if hd % 2 == 0 else 8); den = D + (8 if hd % 2 == 0 else 0)
            A("v_add_f32 v%d, s%d, v%d" % (den, sC1, den)); A("v_rcp_f32 v%d, v%d" % (den, den))
            for r in range(8): A("v_mul_f32 v%d, v%d, v%d" % (num + r, num + r, den))
            for k in range(4): A("v_cvt_pk_bf16_f32 v%d, v%d, v%d" % (OO + 4 * hd + k, num + 2 * k, num + 2 * k + 1))
            A("buffer_store_dwordx4 %s, v%d, %s, s%d offen offset:%d sc1" % (vr(OO + 4 * hd, 4), self.vL16, sr(S_WS, 4), self.sACT if hd < 2 else sT[0], 2048 * (hd % 2)), tag="o%d" % hd)
        s += self.publish(1, ["o%d" % h for h in range(4)])
        s += self.stamp(11, self.vST)
        return s

    def final_pre(self, vA, vO, vXr):
        s = []; A = lambda t, **k: s.extend([I(t, **k)] if k else L(t))
        A("v_lshrrev_b32 v%d, 3, v0" % vA); A("v_and_b32 v%d, 7, v0" % vO)
        A("s_lshl_b32 s%d, s%d, 6" % (sT[0], sRT)); A("s_lshl_b32 s%d, s%d, 3" % (sT[1], sW)); A("s_add_u32 s%d, s%d, s%d" % (sT[0], sT[0], sT[1]))
        A("s_lshl_b32 s%d, s%d, 10" % (sT[0], sT[0])); A("s_lshl_b32 s%d, s%d, 7" % (sT[2], sCG)); A("s_add_u32 s%d, s%d, s%d" % (sT[5], sT[0], sT[2]))
        A("v_bfe_u32 v%d, v%d, 1, 1" % (vXr, vA)); A("v_lshl_add_u32 v%d, v%d, 3, v%d" % (vXr, vXr, vA)); A("v_xor_b32 v%d, v%d, v%d" % (vXr, vXr, vO))
        A("v_lshlrev_b32 v%d, 4, v%d" % (vO, vO)); A("v_lshl_add_u32 v%d, v%d, 10, v%d" % (vO, vA, vO))
        A("v_lshlrev_b32 v%d, 8, v%d" % (vA, vA)); A("v_lshl_add_u32 v%d, v%d, 4, v%d" % (vA, vXr, vA)); A("s_lshl_b32 s%d, s%d, 11" % (sT[1], sW)); A("v_add_u32 v%d, s%d, v%d" % (vA, sT[1], vA))
        A("v_xor_b32 v%d, 128, v%d" % (vA + 1, vA))
        A("buffer_load_dwordx4 %s, v%d, %s, s%d offen" % (vr(vXr, 4), vO, sr(S_X, 4), sT[5]))
        return s
    def final(self, vA, vO, vXr, T, vST):
        s = []; A = lambda t, **k: s.extend([I(t, **k)] if k else L(t))
        for w in range(4):
            for e in range(2): A("ds_read_b128 %s, v%d offset:%d" % (vr(T + 8 * w + 4 * e, 4), vA + e, 16384 * w))
        XF = T + 32
        A("s_mov_b32 s%d, 0x%x" % (sC0, LN2))
        for k in range(4):
            A("v_lshlrev_b32 v%d, 16, v%d" % (XF + 2 * k, vXr + k)); A("v_and_b32 v%d, 0xffff0000, v%d" % (XF + 2 * k + 1, vXr + k))
        for r in range(8): A("v_add_f32 v%d, v%d, v%d" % (T + r, T + r, T + 8 + r))
        for r in range(8): A("v_add_f32 v%d, v%d, v%d" % (T + 16 + r, T + 16 + r, T + 24 + r))
        for r in range(8): A("v_add_f32 v%d, v%d, v%d" % (T + r, T + r, T + 16 + r))
        for r in range(8): A("v_fmac_f32 v%d, s%d, v%d" % (XF + r, sC0, T + r))
        for k in range(4): A("v_cvt_pk_bf16_f32 v%d, v%d, v%d" % (T + k, XF + 2 * k, XF + 2 * k + 1))
        A("buffer_store_dwordx4 %s, v%d, %s, s%d offen" % (vr(T, 4), vO, sr(S_OUT, 4), sT[5]))
        if self.c.stamps:
            A("s_waitcnt vmcnt(0)")
            s += self.stamp(15, vST)
            A("s_lshl_b32 s%d, s2, 3" % sT[0]); A("s_add_u32 s%d, s%d, s%d" % (sT[0], sT[0], sW)); A("s_lshl_b32 s%d, s%d, 8" % (sT[0], sT[0])); A("s_add_u32 s%d, s%d, %d" % (sT[0], sT[0], STAMPS))
            A("v_writelane_b32 v%d, s%d, 31" % (vST, sSPIN))
            A("v_lshlrev_b32 v%d, 2, v0" % T); A("buffer_store_dword v%d, v%d, %s, s%d offen" % (vST, T, sr(S_WS, 4), sT[0]))
        A("s_endpgm")
        return s
    def p1_tail(self):
        s = L("L_p1_done:")
        s += self.final_pre(16, 18, 20)
        s += L(["s_barrier", "s_barrier"])
        s += self.final(16, 18, 20, 32, self.vST)
        return s

    def l_head(self):
        c = self.c; s = []; A = lambda t, **k: s.extend([I(t, **k)] if k else L(t))
        self.lK = sA[0:4]; self.lCOL = sA[4:8]; self.lW4, self.lA, self.lB, self.lAF, self.lWF = sA[8:13]
        self.lvG = [4, 5, 6, 7]
        w4 = self.lW4
        A("L_lwave:")
        if c.stamps: A("v_mov_b32 v9, 0")
        A("s_sub_u32 s%d, s%d, 4" % (w4, sW))
        A("s_lshl_b32 s%d, s%d, 9" % (sPITCH, sTY)); A("s_add_u32 s%d, s%d, 3072" % (sPITCH, sPITCH))
        A("v_lshlrev_b32 v1, 4, v0"); A("v_mov_b32 v2, %d" % CNT); A("v_mov_b32 v3, 1")
        A("v_lshrrev_b32 v10, 3, v0"); A("v_and_b32 v11, 7, v0"); A("v_bfe_u32 v12, v10, 1, 1"); A("v_lshlrev_b32 v12, 2, v12"); A("v_xor_b32 v12, v12, v11"); A("v_lshlrev_b32 v12, 4, v12")
        A("v_mul_lo_u32 v10, v10, s%d" % sPITCH); A("v_add_u32 v4, v10, v12")
        A("s_lshl_b32 s%d, s%d, 3" % (sT[0], sPITCH)); A("s_sub_u32 s%d, s%d, 1024" % (sT[0], sT[0]))
        for g in range(1, 4): A("v_add_u32 v%d, s%d, v%d" % (4 + g, sT[0], 3 + g))
        for n in range(4):
            A("s_lshl_b32 s%d, s%d, 1" % (sT[0], sROT)); A("s_add_u32 s%d, s%d, s%d" % (sT[0], sT[0], w4)); A("s_add_u32 s%d, s%d, %d" % (sT[0], sT[0], 4 * n)); A("s_and_b32 s%d, s%d, 15" % (sT[0], sT[0]))
            A("s_lshl_b32 s%d, s%d, 5" % (sT[0], sT[0])); A("s_mul_i32 s%d, s%d, s%d" % (self.lK[n], sT[0], sPITCH))
        t0, t1, t2 = sT[:3]
        A("s_lshr_b32 s%d, s%d, 1" % (t0, sG)); A("s_mul_i32 s%d, s%d, 896" % (t0, t0)); A("s_add_u32 s%d, s%d, 384" % (self.lCOL[3], t0))
        A("s_and_b32 s%d, s%d, 1" % (t1, sG)); A("s_lshl_b32 s%d, s%d, 9" % (t1, t1)); A("s_add_u32 s%d, s%d, s%d" % (t0, t0, t1))
        A("s_lshl_b32 s%d, s%d, 7" % (t1, sG))
        A("s_cmp_eq_u32 s%d, 0" % sTY); A("s_cselect_b32 s%d, s%d, s%d" % (t0, t1, t0))
        for b, (ca, cm) in enumerate(((1024, 0), (2048, 128), (0, 256))):
            A("s_cmp_eq_u32 s%d, 0" % sTY); A("s_cselect_b32 s%d, %d, %d" % (t1, ca, 0)); A("s_cselect_b32 s%d, %d, %d" % (t2, 0, cm))
            A("s_add_u32 s%d, s%d, s%d" % (t1, t1, t2)); A("s_add_u32 s%d, s%d, s%d" % (self.lCOL[b], t0, t1))
        A("s_mul_i32 s%d, s%d, 36" % (t2, w4))
        A("s_mul_i32 s%d, s%d, 144" % (t0, sRT)); A("s_add_u32 s%d, s%d, s%d" % (t0, t0, t2)); A("s_lshl_b32 s%d, s%d, 11" % (t0, t0)); A("s_add_u32 s%d, s%d, %d" % (self.lA, t0, ACT))
        A("s_mul_i32 s%d, s%d, 144" % (t0, sCG)); A("s_add_u32 s%d, s%d, s%d" % (t0, t0, t2)); A("s_lshl_b32 s%d, s%d, 2" % (self.lWF, t0)); A("s_add_u32 s%d, s%d, %d" % (self.lWF, self.lWF, W2F))
        A("s_lshl_b32 s%d, s%d, 11" % (t0, t0)); A("s_add_u32 s%d, s%d, %d" % (self.lB, t0, W2T))
        A("s_lshl_b32 s%d, s%d, 7" % (t0, sRT)); A("s_lshl_b32 s%d, s%d, 5" % (t1, w4)); A("s_add_u32 s%d, s%d, s%d" % (self.lAF, t0, t1))
        s += self.srds()
        A("s_cmp_eq_u32 s%d, 0" % sTY); A("s_cselect_b32 s%d, s%d, s%d" % (S_W, KA + 2, KA + 8)); A("s_cselect_b32 s%d, s%d, s%d" % (S_W + 1, KA + 3, KA + 9))
        A("s_lshl_b32 s%d, s%d, 9" % (S_W + 2, sPITCH)); A("s_mov_b32 s%d, 0x20000" % (S_W + 3))
        s += self.srd(S_B1, KA + 10, 3584)
        A("s_barrier")
        lz = self.lab("noinit")
        A("s_or_b32 s%d, s2, s%d" % (t0, w4)); A("s_cmp_lg_u32 s%d, 0" % t0); A("s_cbranch_scc1 %s" % lz)
        z = L(["v_mov_b32 v%d, 0" % r for r in range(12, 16)])
        for k in range(FLG_KB):
            z += L(["s_mov_b32 s%d, %d" % (t0, 1024 * k), "buffer_store_dwordx4 v[12:15], v1, %s, s%d offen sc1" % (sr(S_WS, 4), t0)])
        z += L(["s_waitcnt vmcnt(0)", "s_mov_b64 exec, 1", "buffer_store_dword v3, v12, %s, 0 offen sc1" % sr(S_DBG, 4), "s_mov_b64 exec, -1"])
        s += maybe(z)
        A("%s:" % lz)
        if c.codepf:
            A("s_getpc_b64 s[%d:%d]" % (sT[2], sT[3])); A("L_pc:")
            A("s_sub_u32 s%d, s%d, L_pc-%s_kernel" % (sT[2], sT[2], NAME)); A("s_subb_u32 s%d, s%d, 0" % (sT[3], sT[3]))
            A("s_lshr_b32 s%d, s2, 3" % t0); A("s_lshl_b32 s%d, s%d, 2" % (t0, t0)); A("s_add_u32 s%d, s%d, s%d" % (t0, t0, w4)); A("s_and_b32 s%d, s%d, 63" % (t0, t0)); A("s_lshl_b32 s%d, s%d, 10" % (t0, t0))
            A("v_lshlrev_b32 v12, 7, v0"); A("v_add_u32 v12, s%d, v12" % t0); A("v_min_u32 v12, L_code_end-%s_kernel-4, v12" % NAME)
            A("s_mov_b64 exec, 0xff"); A("global_load_dword v13, v12, s[%d:%d]" % (sT[2], sT[3])); A("s_mov_b64 exec, -1")
        A("s_cmp_eq_u32 s%d, 0" % sTY); A("s_cbranch_scc1 L_la")
        return s

    def l_body(self, isM):
        c = self.c; s = []; A = lambda t, **k: s.extend([I(t, **k)] if k else L(t))
        vL16, vZ, vONE, vP, vST = 1, 2, 3, 8, 9
        ACC = 192; w4 = self.lW4; nm = "m" if isM else "a"
        if not isM: A("L_la:")
        free = list(range(12, 192, 4))
        vPF = 10; vPW = 11
        def blk(b):
            o = []
            for n in range(4):
                o += L(["s_lshl_b32 s%d, s%d, 12" % (sT[0], w4), "s_add_u32 m0, s%d, %d" % (sT[0], (R0, R1)[b % 2] + 16384 * n), "s_add_u32 s%d, s%d, s%d" % (sT[0], self.lK[n], self.lCOL[b])])
                for g in range(4): o.append(I("buffer_load_dwordx4 v%d, %s, s%d offen offset:%d lds" % (self.lvG[g], sr(S_W, 4), sT[0], 1024 * g), tag="%sb%d_%d" % (nm, b, 4 * n + g)))
            return o
        def full(b, extra=()): return self.lds_signal(C_FULL + 4 * b, vZ, vONE, need=["%sb%d_15" % (nm, b)] + list(extra))
        slotA = {}; slotB = {}
        def ld(kind, n):
            o = []; base = self.lA if kind == "A" else self.lB; tmp = sA[13] if kind == "A" else sA[14]
            if n % 2 == 0: o.append(I("s_add_u32 s%d, s%d, %d" % (tmp, base, 2048 * n)))
            sl = [free.pop(0), free.pop(0)]; (slotA if kind == "A" else slotB)[n] = sl
            for e in range(2): o.append(I("buffer_load_dwordx4 %s, v%d, %s, s%d offen offset:%d sc1" % (vr(sl[e], 4), vL16, sr(S_WS, 4), tmp, 2048 * (n % 2) + 1024 * e)))
            return o
        if isM:
            A("s_mov_b32 s%d, s%d" % (sT[0], self.lCOL[0]))
            for b in range(1, 4):
                A("s_cmp_eq_u32 s%d, %d" % (w4, b)); A("s_cselect_b32 s%d, s%d, s%d" % (sT[0], self.lCOL[b], sT[0]))
            A("v_lshlrev_b32 v14, 1, v0"); A("buffer_load_ushort v15, v14, %s, s%d offen" % (sr(S_B1, 4), sT[0]))
        s += self.stamp(0, vST)
        s += blk(0)
        A("v_and_b32 v%d, 3, v0" % vPF); A("v_lshlrev_b32 v%d, 2, v%d" % (vPF, vPF))
        A("v_min_u32 v%d, 35, v0" % vPW); A("v_lshlrev_b32 v%d, 2, v%d" % (vPW, vPW))
        if isM:
            A("v_lshlrev_b32 v15, 16, v15"); A("v_mul_f32 v15, 0x%x, v15" % LOG2E)
            A("s_lshl_b32 s%d, s%d, 8" % (sT[0], w4)); A("s_add_u32 s%d, s%d, %d" % (sT[0], sT[0], BIAS)); A("v_lshl_add_u32 v14, v0, 2, s%d" % sT[0])
            A("ds_write_b32 v14, v15", tag="bias")
        if c.earlyfull0:
            s += full(0, ["bias"] if isM else [])
        s += self.lds_wait(C_FREEX, vZ, vP)
        s += self.stamp(1, vST)
        b1 = blk(1)
        if not c.earlyfull0: s += b1[:14] + full(0, ["bias"] if isM else []) + b1[14:]
        else: s += b1
        A("v_mov_b32 v14, 0")
        s += self.g_poll_issue(vP, 14, S_DBG, "0") + self.g_poll_check(vP, 14, S_DBG, "0", 1)
        s += self.g_poll_issue(vP, vPW, S_WS, "s%d" % self.lWF)
        s += full(1)
        s += self.stamp(2, vST)
        s += self.g_poll_check(vP, vPW, S_WS, "s%d" % self.lWF, 1)
        s += self.stamp(3, vST)
        nb = 0
        for _ in range(c.partA): s += ld("B", nb); nb += 1
        s += self.lds_wait(C_FREE + 0, vZ, vP)
        s += self.stamp(4, vST)
        s += blk(2)
        k = 0
        for _ in range(c.partB):
            s += ld("B", nb); nb += 1; k += 1
            if k == 4: s += full(2)
        if k < 4: s += full(2)
        if isM:
            s += self.lds_wait(C_FREE + 4, vZ, vP)
            s += self.stamp(5, vST)
            s += blk(3)
        k = 0; fulld = not isM
        s += self.g_poll_issue(vP, vPF, S_WS, "s%d" % self.lAF)
        while nb < c.nB:
            s += ld("B", nb); nb += 1; k += 1
            if k == 4 and not fulld: s += full(3); fulld = True
        if not fulld: s += full(3)
        s += self.stamp(6, vST)
        A("s_add_u32 s%d, s%d, 16" % (sA[15], self.lAF))
        na = 0
        def poll_args(grp): return (vP, vPF, S_WS, "s%d" % (self.lAF if grp < 7 else sA[15]))
        def issueA():
            nonlocal na
            o = []
            if na % 4 == 0 and na <= 28:
                grp = na // 4
                o += self.g_poll_check(*poll_args(grp), grp + 1 if grp < 7 else 1)
                if grp in (0, 4, 7): o += self.stamp({0: 7, 4: 8, 7: 9}[grp], vST)
                if grp < 7: o += self.g_poll_issue(*poll_args(grp + 1))
            o += ld("A", na); na += 1
            return o
        LA = c.lookA
        while na < LA and len(free) >= 2: s += issueA()
        vRW = None
        for n in range(36):
            for ch in range(2):
                for th in range(2):
                    d = ACC + 16 * (2 * ch + th)
                    A("v_mfma_f32_32x32x16_bf16 %s, %s, %s, %s" % (vr(d, 16), vr(slotB[n][ch], 4), vr(slotA[n][th], 4), "0" if n == 0 else vr(d, 16)))
            free += slotA[n] + slotB[n]
            if nb < 36: s += ld("B", nb); nb += 1
            while na < 36 and na < n + 1 + LA and len(free) >= 2: s += issueA()
            if n == 30:
                r1 = free.pop(0); r2 = free.pop(0); r3 = free.pop(0); r4 = free.pop(0)
                s += self.final_pre(r1, r1 + 2, r2)
                vRW = [r3 + k for k in range(4)] + [r4 + k for k in range(4)]
                t = vRW[1]; t2 = vRW[2]; t3 = vRW[3]
                A("v_and_b32 v%d, 31, v0" % t); A("v_lshrrev_b32 v%d, 5, v0" % t2); A("v_bfe_u32 v%d, v0, 1, 1" % t3); A("v_xor_b32 v%d, v%d, v%d" % (t2, t2, t3))
                A("v_and_b32 v%d, 7, v0" % t3); A("v_lshl_add_u32 v%d, v%d, 3, v%d" % (t2, t2, t3)); A("v_lshlrev_b32 v%d, 4, v%d" % (t2, t2)); A("v_lshl_add_u32 v%d, v%d, 8, v%d" % (t, t, t2))
                A("s_lshl_b32 s%d, s%d, 14" % (sT[0], w4)); A("v_add_u32 v%d, s%d, v%d" % (vRW[0], sT[0], t))
                for k in range(1, 8): A("v_xor_b32 v%d, %d, v%d" % (vRW[k], 16 * k, vRW[0]))
                fin = (r1, r1 + 2, r2)
        s += self.stamp(10, vST)
        A("s_barrier")
        for ch in range(2):
            for th in range(2):
                for q in range(4): A("ds_write_b128 v%d, %s offset:%d" % (vRW[4 * ch + q], vr(ACC + 16 * (2 * ch + th) + 4 * q, 4), 8192 * th))
        A("s_waitcnt lgkmcnt(0)"); A("s_barrier")
        s += self.stamp(11, vST)
        s += self.final(*fin, ACC, vST)
        return s

    def build(self):
        c = self.c
        def run(tr, st): return tr.run(st)
        t0 = Tracker(); out = t0.run(self.prologue())
        tp = copy.deepcopy(t0); tl = copy.deepcopy(t0)
        out += tp.run(self.p1_head())
        tm = copy.deepcopy(tp); ta = copy.deepcopy(tp)
        out += tm.run(self.p1_m()); out += ta.run(self.p1_a())
        tt = Tracker(); out += tt.run(L("s_nop 0") + self.p1_tail())
        out += tl.run(self.l_head())
        tlm = copy.deepcopy(tl); tla = copy.deepcopy(tl)
        out += tlm.run(self.l_body(True)); out += tla.run(self.l_body(False))
        out += self.slow
        out += L(["L_end:", "s_endpgm", "L_code_end:"])
        self.stats = dict(p1m=(tm.nnop, tm.nwait), p1a=(ta.nnop, ta.nwait), lm=(tlm.nnop, tlm.nwait))
        hdr = open("cdna_kernels/%s.s.ref" % NAME).read().split("; Override")[0]
        txt = hdr + "; @launch grid=(256,1,1) block=(512,1,1) lds=%d\n" % LDS_BYTES
        txt += '.amdgcn_target "amdgcn-amd-amdhsa--gfx950"\n.text\n.globl %s_kernel\n.p2align 8\n.type %s_kernel,@function\n%s_kernel:\n' % (NAME, NAME, NAME)
        txt += text(out) + "\n"
        txt += """.section .rodata,"a"
.p2align 6
.amdhsa_kernel %s_kernel
  .amdhsa_next_free_vgpr 256
  .amdhsa_next_free_sgpr 102
  .amdhsa_accum_offset 256
  .amdhsa_group_segment_fixed_size 0
  .amdhsa_kernarg_size 80
  .amdhsa_user_sgpr_count 2
  .amdhsa_user_sgpr_kernarg_segment_ptr 1
  .amdhsa_system_sgpr_workgroup_id_x 1
.end_amdhsa_kernel
""" % NAME
        return txt
Cfg.earlyfull0 = False
Cfg.lookA = 4
def make(**kw):
    c = Cfg()
    for k, v in kw.items():
        assert hasattr(c, k), k
        setattr(c, k, v)
    g = Gen(c); t = g.build()
    return t, g
if __name__ == "__main__":
    kw = {}
    out = "cdna_kernels/%s.s" % NAME
    for a in sys.argv[1:]:
        k, v = a.split("=")
        if k == "out": out = v
        else: kw[k] = eval(v) if not v.isalpha() or v in ("True", "False") else v
    t, g = make(**kw)
    open(out, "w").write(t); print("written", out, len(t), g.stats)
```

```python
import sys, copy
from asmgen import *

NAME = "parallel_sum__linear_attn_block__dense_activation_mish__prompt"
LOG2E = 0x3fb8aa3b; LN2 = 0x3f317218; EPS6 = 0x358637bd; EPS5 = 0x3727c5ac

ACTF = 0; KVF = 16384; W2F = 20480; FLG_KB = 24
KVZ = 32768; KVS = 65536; W2T = 1 << 20; ACT = 4 << 20; STAMPS = 16 << 20
WS_BYTES = 0x10000000; OOB = 0x40000000
R0 = 0; R1 = 65536; XB = 65536; XW = 20480; SP = 131072
STG = 147456; STG2 = 155648; BIAS = 157696; RTAB = 158720; CNT = 159232; ZP = 159360; SR = 160384; ZR = 162432; LDS_BYTES = 162688
C_FULL = 0; C_FREEX = 16; C_FREE = 20; C_KVP = 32; C_KVR = 36
S_X = 4; S_W = 8; S_WS = 12; S_U1 = 16; S_U2 = 20; S_OUT = 24; S_DBG = 28; S_B1 = 32
KA = 36
sW = 56; sI = 57; sG = 58; sTY = 59; sRT = 60; sCG = 61; sROT = 62; sPITCH = 63
sT = [64, 65, 66, 67, 68, 69]
sA = list(range(70, 86))
sSPIN = 86; sC0 = 87; sC1 = 88; sPL = 89; sM16 = 90
sST = 92

class Cfg:
    stamps = False
    p1map = "sq"; p2map = "r4c8"
    rot = 1
    nB = 18
    partA = 5; partB = 5
    spin = 1 << 16
    codepf = True
    probe = 0

class Gen:
    def __init__(self, cfg):
        self.c = cfg; self.slow = []; self.nlab = 0; self.nst = 0
    def lab(self, p):
        self.nlab += 1; return "L_%s_%d" % (p, self.nlab)
    def stamp(self, n, vreg):
        if not self.c.stamps: return []
        return L(["s_memrealtime s[92:93]", "s_waitcnt lgkmcnt(0)", "v_writelane_b32 v%d, s92, %d" % (vreg, n)])
    def lds_signal(self, off, vz, vone, need=()):
        return [Need(*need), I("s_mov_b64 exec, 1", glue=True), I("ds_add_u32 v%d, v%d offset:%d" % (vz, vone, off), glue=True), I("s_mov_b64 exec, -1", glue=True)]
    def lds_poll_issue(self, off, vz, vt): return [I("ds_read_b32 v%d, v%d offset:%d" % (vt, vz, off))]
    def lds_poll_check(self, off, vz, vt, cnt=4):
        a = self.lab("lp"); b = self.lab("lr")
        self.slow += L(["%s:" % a, "s_add_u32 s%d, s%d, 1" % (sSPIN, sSPIN), "s_cmp_gt_u32 s%d, %d" % (sSPIN, self.c.spin), "s_cbranch_scc1 %s" % b,
                        "ds_read_b32 v%d, v%d offset:%d" % (vt, vz, off), "s_waitcnt lgkmcnt(0)", "v_cmp_gt_u32 vcc, %d, v%d" % (cnt, vt), "s_cbranch_vccnz %s" % a, "s_branch %s" % b])
        return [I("v_cmp_gt_u32 vcc, %d, v%d" % (cnt, vt)), I("s_cbranch_vccnz %s" % a, glue=True), I("%s:" % b, glue=True)]
    def lds_wait(self, off, vz, vt, cnt=4): return self.lds_poll_issue(off, vz, vt) + self.lds_poll_check(off, vz, vt, cnt)
    def g_poll_issue(self, vt, voff, srd, soff): return [I("buffer_load_dword v%d, v%d, %s, %s offen sc1" % (vt, voff, sr(srd, 4), soff))]
    def g_poll_check(self, vt, voff, srd, soff, cnt):
        a = self.lab("gp"); b = self.lab("gr")
        self.slow += L(["%s:" % a, "s_add_u32 s%d, s%d, 1" % (sSPIN, sSPIN), "s_cmp_gt_u32 s%d, %d" % (sSPIN, self.c.spin), "s_cbranch_scc1 %s" % b,
                        "buffer_load_dword v%d, v%d, %s, %s offen sc1" % (vt, voff, sr(srd, 4), soff), "s_waitcnt vmcnt(0)", "v_cmp_gt_u32 vcc, %d, v%d" % (cnt, vt), "s_cbranch_vccnz %s" % a, "s_branch %s" % b])
        return [I("v_cmp_gt_u32 vcc, %d, v%d" % (cnt, vt)), I("s_cbranch_vccnz %s" % a, glue=True), I("%s:" % b, glue=True)]
    def a_poll_issue(self, vt, voff, soff, off=0):
        return [I("v_mov_b32 v%d, 0" % vt), I("buffer_atomic_add v%d, v%d, %s, %s offen offset:%d sc0 sc1" % (vt, voff, sr(S_WS, 4), soff, off))]
    def a_poll_check(self, vt, voff, soff, cnt, off=0):
        a = self.lab("ap"); b = self.lab("ar")
        self.slow += L(["%s:" % a, "s_add_u32 s%d, s%d, 1" % (sSPIN, sSPIN), "s_cmp_gt_u32 s%d, %d" % (sSPIN, self.c.spin), "s_cbranch_scc1 %s" % b, "v_mov_b32 v%d, 0" % vt,
                        "buffer_atomic_add v%d, v%d, %s, %s offen offset:%d sc0 sc1" % (vt, voff, sr(S_WS, 4), soff, off), "s_waitcnt vmcnt(0)", "v_readfirstlane_b32 s%d, v%d" % (sPL, vt), "s_nop 0",
                        "s_cmp_lt_u32 s%d, %d" % (sPL, cnt), "s_cbranch_scc1 %s" % a, "s_branch %s" % b])
        return [I("v_readfirstlane_b32 s%d, v%d" % (sPL, vt)), I("s_cmp_lt_u32 s%d, %d" % (sPL, cnt), glue=True), I("s_cbranch_scc1 %s" % a, glue=True), I("%s:" % b, glue=True)]
    def a_signal(self, vone, voff, soff, off=0, need=(), **k):
        return [I("buffer_atomic_add v%d, v%d, %s, s%d offen offset:%d sc1" % (vone, voff, sr(S_WS, 4), soff, off), need=need, **k)]
    def srd(self, d, p, nbytes): return L(["s_mov_b32 s%d, s%d" % (d, p), "s_mov_b32 s%d, s%d" % (d + 1, p + 1), "s_mov_b32 s%d, 0x%x" % (d + 2, nbytes), "s_mov_b32 s%d, 0x20000" % (d + 3)])

    def prologue(self):
        c = self.c; s = []; A = lambda t: s.extend(L(t))
        A("s_cmp_ge_u32 s2, 256"); A("s_cbranch_scc1 L_end")
        A("s_load_dwordx16 s[36:51], s[0:1], 0"); A("s_load_dwordx4 s[52:55], s[0:1], 64")
        A("v_lshrrev_b32 v1, 6, v0"); A("v_and_b32 v0, 63, v0"); A("v_readfirstlane_b32 s%d, v1" % sW)
        A("v_lshlrev_b32 v2, 2, v0"); A("v_and_b32 v2, 0x7c, v2"); A("v_add_u32 v2, %d, v2" % CNT); A("v_mov_b32 v3, 0"); A("ds_write_b32 v2, v3")
        t0, t1, t2 = sT[:3]
        A("s_and_b32 s%d, s2, 7" % t0); A("s_lshr_b32 s%d, s2, 3" % t1)
        if c.p1map == "sq":
            A("s_lshr_b32 s%d, s%d, 2" % (sI, t0)); A("s_lshl_b32 s%d, s%d, 3" % (sI, sI)); A("s_lshr_b32 s%d, s%d, 2" % (t2, t1)); A("s_add_u32 s%d, s%d, s%d" % (sI, sI, t2))
            A("s_and_b32 s%d, s%d, 3" % (sG, t0)); A("s_lshl_b32 s%d, s%d, 1" % (sG, sG)); A("s_and_b32 s%d, s%d, 1" % (t2, t1)); A("s_add_u32 s%d, s%d, s%d" % (sG, sG, t2))
            A("s_bfe_u32 s%d, s%d, 0x10001" % (sTY, t1))
            A("s_and_b32 s%d, s%d, 3" % (sROT, t1))
        elif c.p1map == "mid":
            A("s_lshr_b32 s%d, s%d, 1" % (sI, t0)); A("s_lshl_b32 s%d, s%d, 2" % (sI, sI)); A("s_lshr_b32 s%d, s%d, 3" % (t2, t1)); A("s_add_u32 s%d, s%d, s%d" % (sI, sI, t2))
            A("s_and_b32 s%d, s%d, 1" % (sG, t0)); A("s_lshl_b32 s%d, s%d, 2" % (sG, sG)); A("s_and_b32 s%d, s%d, 3" % (t2, t1)); A("s_add_u32 s%d, s%d, s%d" % (sG, sG, t2))
            A("s_bfe_u32 s%d, s%d, 0x10002" % (sTY, t1))
            A("s_and_b32 s%d, s%d, 3" % (sROT, t1))
        elif c.p1map == "row":
            A("s_lshl_b32 s%d, s%d, 1" % (sI, t0)); A("s_lshr_b32 s%d, s%d, 4" % (t2, t1)); A("s_add_u32 s%d, s%d, s%d" % (sI, sI, t2))
            A("s_and_b32 s%d, s%d, 7" % (sG, t1)); A("s_bfe_u32 s%d, s%d, 0x10003" % (sTY, t1))
            A("s_and_b32 s%d, s%d, 3" % (sROT, t1))
        if c.rot == 0: A("s_mov_b32 s%d, 0" % sROT)
        elif c.rot == 1: A("s_lshl_b32 s%d, s%d, 1" % (sROT, sROT))
        elif c.rot == 2:
            A("s_add_u32 s%d, s%d, s%d" % (sROT, sROT, sI)); A("s_and_b32 s%d, s%d, 3" % (sROT, sROT)); A("s_lshl_b32 s%d, s%d, 1" % (sROT, sROT))
        if c.p2map == "r4c8":
            A("s_lshl_b32 s%d, s%d, 2" % (sRT, t0)); A("s_lshr_b32 s%d, s%d, 3" % (t2, t1)); A("s_add_u32 s%d, s%d, s%d" % (sRT, sRT, t2)); A("s_and_b32 s%d, s%d, 7" % (sCG, t1))
        elif c.p2map == "r8c4":
            A("s_lshr_b32 s%d, s%d, 1" % (sRT, t0)); A("s_lshl_b32 s%d, s%d, 3" % (sRT, sRT)); A("s_lshr_b32 s%d, s%d, 2" % (t2, t1)); A("s_add_u32 s%d, s%d, s%d" % (sRT, sRT, t2))
            A("s_and_b32 s%d, s%d, 1" % (sCG, t0)); A("s_lshl_b32 s%d, s%d, 2" % (sCG, sCG)); A("s_and_b32 s%d, s%d, 3" % (t2, t1)); A("s_add_u32 s%d, s%d, s%d" % (sCG, sCG, t2))
        A("s_mov_b32 s%d, 0" % sSPIN)
        A("s_cmp_ge_u32 s%d, 4" % sW); A("s_cbranch_scc1 L_lwave")
        return s
    def srds(self):
        s = L("s_waitcnt lgkmcnt(0)")
        s += self.srd(S_X, KA + 0, 2048 * 1024) + self.srd(S_WS, 54, WS_BYTES) + self.srd(S_DBG, 52, 256) + self.srd(S_OUT, KA + 14, 2048 * 1024)
        return s

    vL16 = 1; vZ = 2; vONE = 3; vFLG = 4; vTR = 5; vPOLL = 9; vR = 10; vBA = 11; vTMP = 12; vST = 13; vINIT = 14; vFV = 15
    T0 = 16; BF = 64; ACC = (96, 112); X = 128
    def unit_decode(self, sU, srd, so_src, so_dst, so_flag):
        t0, t1, t2, t3, t4 = sT[:5]; s = []; A = lambda t: s.extend(L(t))
        A("s_lshr_b32 s%d, s%d, 3" % (t0, sU)); A("s_and_b32 s%d, s%d, 7" % (sU, sU))
        A("s_mul_i32 s%d, s%d, 144" % (t1, sU)); A("s_add_u32 s%d, s%d, s%d" % (t1, t1, t0))
        A("s_lshl_b32 s%d, s%d, 11" % (so_dst, t1)); A("s_add_u32 s%d, s%d, %d" % (so_dst, so_dst, W2T))
        A("s_mul_i32 s%d, s%d, 1821" % (t1, t0)); A("s_lshr_b32 s%d, s%d, 16" % (t1, t1))
        A("s_lshl_b32 s%d, s%d, 2" % (so_flag, sU)); A("s_add_u32 s%d, s%d, s%d" % (so_flag, so_flag, t1)); A("s_lshl_b32 s%d, s%d, 7" % (so_flag, so_flag)); A("s_add_u32 s%d, s%d, %d" % (so_flag, so_flag, W2F))
        A("s_mul_i32 s%d, s%d, 36" % (t2, t1)); A("s_sub_u32 s%d, s%d, s%d" % (t0, t0, t2))
        A("s_bfe_u32 s%d, s%d, 0x10001" % (t2, t0))
        A("s_lshr_b32 s%d, s%d, 2" % (t3, t0)); A("s_lshl_b32 s%d, s%d, 1" % (t3, t3))
        A("s_cmp_lt_u32 s%d, 24" % t0); A("s_cselect_b32 s%d, 4, 1" % t4); A("s_lshl_b32 s%d, s%d, s%d" % (t2, t2, t4))
        A("s_add_u32 s%d, s%d, s%d" % (t3, t3, t2)); A("s_and_b32 s%d, s%d, 1" % (t2, t0)); A("s_add_u32 s%d, s%d, s%d" % (t3, t3, t2))
        A("s_mul_i32 s%d, s%d, 28" % (t2, t1)); A("s_add_u32 s%d, s%d, s%d" % (t3, t3, t2))
        A("s_lshl_b32 s%d, s%d, 3" % (t1, t1)); A("s_add_u32 s%d, s%d, s%d" % (t1, t1, t0)); A("s_sub_u32 s%d, s%d, 28" % (t1, t1))
        A("s_cmp_lt_u32 s%d, 28" % t0); A("s_cselect_b32 s%d, s%d, s%d" % (t3, t3, t1)); A("s_cselect_b32 s%d, 7, 2" % (srd + 2)); A("s_lshl_b32 s%d, s%d, 18" % (srd + 2, srd + 2))
        A("s_lshl_b32 s%d, s%d, 14" % (t3, t3)); A("s_lshl_b32 s%d, s%d, 7" % (sU, sU)); A("s_add_u32 s%d, s%d, s%d" % (so_src, t3, sU))
        return s
    def unit_srd(self, srd):
        return L(["s_cmp_eq_u32 s%d, 0x80000" % (srd + 2), "s_cselect_b32 s%d, s%d, s%d" % (srd, KA + 4, KA + 12), "s_cselect_b32 s%d, s%d, s%d" % (srd + 1, KA + 5, KA + 13), "s_mov_b32 s%d, 0x20000" % (srd + 3)])

    def p1_head(self):
        c = self.c; s = []; A = lambda t, **k: s.extend([I(t, **k)] if k else L(t))
        X = self.X; T0 = self.T0
        u1, u1s, u1d, u1f, u2, u2s, u2d, u2f, sXL, sHAS2, sACT, sAF = sA[:12]
        self.sACT = sACT; self.sAF = sAF
        vXG = [16, 17, 18, 19]; vUG = [20, 21]; vXR = [22, 23, 24, 25]; vUR = [26, 27]; S1 = [28, 29]; S2 = [30, 31]
        SEL = 32; NEG = 40; UW = 56
        D3 = self.BF
        A("s_setprio 2")
        if c.stamps: A("v_mov_b32 v%d, 0" % self.vST)
        A("v_lshlrev_b32 v%d, 4, v0" % self.vL16)
        A("v_lshrrev_b32 v70, 3, v0"); A("v_and_b32 v71, 7, v0")
        A("v_lshrrev_b32 v72, 1, v70"); A("v_xor_b32 v72, v72, v71")
        A("s_lshl_b32 s%d, s%d, 7" % (sT[0], sI)); A("s_lshl_b32 s%d, s%d, 5" % (sT[1], sW)); A("s_add_u32 s%d, s%d, s%d" % (sT[0], sT[0], sT[1]))
        A("v_add_u32 v73, s%d, v70" % sT[0]); A("v_lshlrev_b32 v73, 10, v73")
        A("v_lshl_add_u32 v%d, v72, 4, v73" % vXG[0])
        A("v_xor_b32 v74, 64, v%d" % vXG[0])
        A("v_add_u32 v%d, %d, v74" % (vXG[1], 7168)); A("v_add_u32 v%d, %d, v%d" % (vXG[2], 2 * 7168, vXG[0])); A("v_add_u32 v%d, %d, v74" % (vXG[3], 3 * 7168))
        A("v_bfe_u32 v72, v70, 1, 1"); A("v_lshlrev_b32 v72, 2, v72"); A("v_xor_b32 v72, v72, v71"); A("v_lshlrev_b32 v72, 4, v72")
        A("v_lshl_add_u32 v%d, v70, 10, v72" % vUG[0]); A("v_add_u32 v%d, 7168, v%d" % (vUG[1], vUG[0]))
        A("s_lshl_b32 s%d, s2, 2" % u1); A("s_add_u32 s%d, s%d, s%d" % (u1, u1, sW))
        s += self.unit_decode(u1, S_U1, u1s, u1d, u1f)
        A("s_lshl_b32 s%d, s%d, 3" % (u2, sI)); A("s_add_u32 s%d, s%d, s%d" % (u2, u2, sG)); A("s_add_u32 s%d, s%d, 1024" % (u2, u2))
        s += self.unit_decode(u2, S_U2, u2s, u2d, u2f)
        A("s_or_b32 s%d, s%d, s%d" % (sHAS2, sTY, sW))
        A("s_mul_i32 s%d, s%d, %d" % (sXL, sW, XW)); A("s_add_u32 s%d, s%d, %d" % (sXL, sXL, XB))
        s += self.srds()
        s += self.unit_srd(S_U1) + self.unit_srd(S_U2)
        l2 = self.lab("skipu")
        A("s_cmp_lg_u32 s%d, 0" % sHAS2); A("s_cbranch_scc1 %s" % l2)
        s += maybe([I("s_mov_b32 m0, %d" % STG2)] + [I("buffer_load_dwordx4 v%d, %s, s%d offen offset:%d lds" % (vUG[g], sr(S_U2, 4), u2s, 1024 * g), tag="u2raw%d" % g) for g in range(2)])
        A("%s:" % l2)
        A("s_lshl_b32 s%d, s%d, 11" % (sT[0], sW)); A("s_add_u32 m0, s%d, %d" % (sT[0], STG))
        for g in range(2): A("buffer_load_dwordx4 v%d, %s, s%d offen offset:%d lds" % (vUG[g], sr(S_U1, 4), u1s, 1024 * g), tag="u1raw%d" % g)
        def xdma(ch):
            o = L(["s_add_u32 s%d, s%d, %d" % (sT[0], sROT, ch), "s_and_b32 s%d, s%d, 7" % (sT[0], sT[0]), "s_add_u32 m0, s%d, %d" % (sXL, (ch % 5) * 4096), "s_lshl_b32 s%d, s%d, 7" % (sT[0], sT[0])])
            for g in range(4): o.append(I("buffer_load_dwordx4 v%d, %s, s%d offen offset:%d lds" % (vXG[g], sr(S_X, 4), sT[0], 1024 * g), tag="x%d_%d" % (ch, g)))
            return o
        s += xdma(0)
        A("s_barrier")
        for ch in range(1, 5): s += xdma(ch)
        s += self.stamp(0, self.vST)
        A("v_mov_b32 v%d, %d" % (self.vZ, CNT)); A("v_mov_b32 v%d, 1" % self.vONE)
        A("v_cmp_eq_u32 vcc, 0, v0"); A("v_mov_b32 v75, 0x%x" % OOB); A("v_cndmask_b32 v%d, v75, 0, vcc" % self.vFLG)
        A("v_and_b32 v70, 31, v0"); A("v_lshrrev_b32 v71, 5, v0")
        A("v_cmp_gt_u32 s[%d:%d], 16, v70" % (sM16, sM16 + 1))
        A("v_bfe_u32 v72, v70, 1, 3"); A("v_xor_b32 v72, v72, v71"); A("v_lshlrev_b32 v72, 4, v72"); A("v_lshl_add_u32 v72, v70, 7, v72")
        A("v_add_u32 v%d, s%d, v72" % (vXR[0], sXL))
        for k in range(1, 4): A("v_xor_b32 v%d, %d, v%d" % (vXR[k], 32 * k, vXR[0]))
        A("v_bfe_u32 v72, v0, 2, 2"); A("v_bfe_u32 v73, v0, 3, 1"); A("v_lshlrev_b32 v73, 6, v73"); A("v_lshl_add_u32 v73, v72, 7, v73")
        A("v_bfe_u32 v72, v0, 4, 1"); A("v_lshl_add_u32 v73, v72, 5, v73"); A("v_and_b32 v72, 3, v0"); A("v_lshl_add_u32 v73, v72, 3, v73")
        A("v_lshl_add_u32 v%d, v71, 10, v73" % self.vTR)
        A("v_xor_b32 v%d, 64, v%d" % (self.vTR + 1, self.vTR))
        A("v_add_u32 v%d, %d, v%d" % (self.vTR + 2, R1, self.vTR)); A("v_add_u32 v%d, %d, v%d" % (self.vTR + 3, R1, self.vTR + 1))
        A("v_lshl_add_u32 v73, v71, 9, v73")
        A("s_lshl_b32 s%d, s%d, 11" % (sT[0], sW)); A("s_add_u32 s%d, s%d, %d" % (sT[0], sT[0], STG))
        A("v_add_u32 v%d, s%d, v73" % (vUR[0], sT[0])); A("v_xor_b32 v%d, 64, v%d" % (vUR[1], vUR[0]))
        A("v_lshlrev_b32 v%d, 4, v71" % self.vBA)
        A("v_lshrrev_b32 v72, 3, v70"); A("v_lshlrev_b32 v72, 1, v72"); A("v_bfe_u32 v73, v70, 1, 1"); A("v_add_u32 v72, v72, v73")
        A("v_bfe_u32 v73, v70, 2, 1"); A("v_xor_b32 v73, v73, v71"); A("v_lshl_add_u32 v72, v73, 4, v72")
        A("v_and_b32 v73, 1, v70"); A("v_lshlrev_b32 v73, 4, v73"); A("v_mov_b32 v74, 0x3f80"); A("v_lshlrev_b32 v73, v73, v74")
        for d in range(8):
            A("v_cmp_eq_u32 vcc, %d, v72" % d); A("v_cndmask_b32 v%d, 0, v73, vcc" % (SEL + d))
        for r in S1 + S2: A("v_mov_b32 v%d, 0" % r)
        A("s_mov_b32 s%d, 0x3f803f80" % sC0)
        t0, t1, t2, t3 = sT[:4]
        A("s_lshl_b32 s%d, s%d, 1" % (t0, sI)); A("s_lshr_b32 s%d, s%d, 1" % (t1, sW)); A("s_add_u32 s%d, s%d, s%d" % (t0, t0, t1))
        A("s_lshr_b32 s%d, s%d, 1" % (t1, sG)); A("s_and_b32 s%d, s%d, 1" % (t2, sG)); A("s_and_b32 s%d, s%d, 1" % (t3, sW))
        A("s_lshl_b32 s%d, s%d, 2" % (sAF, t0)); A("s_add_u32 s%d, s%d, s%d" % (sAF, sAF, t1)); A("s_lshl_b32 s%d, s%d, 7" % (sAF, sAF))
        A("s_mul_i32 s%d, s%d, 144" % (t0, t0)); A("s_mul_i32 s%d, s%d, 36" % (t1, t1)); A("s_add_u32 s%d, s%d, s%d" % (t0, t0, t1))
        A("s_cmp_eq_u32 s%d, 0" % sTY); A("s_cselect_b32 s%d, 2, 1" % t1); A("s_lshl_b32 s%d, s%d, s%d" % (t2, t2, t1)); A("s_add_u32 s%d, s%d, s%d" % (t0, t0, t2))
        A("s_cmp_eq_u32 s%d, 0" % sTY); A("s_cselect_b32 s%d, 28, 0" % t1); A("s_add_u32 s%d, s%d, s%d" % (t0, t0, t1))
        A("s_lshl_b32 s%d, s%d, 1" % (t0, t0)); A("s_add_u32 s%d, s%d, s%d" % (t0, t0, t3)); A("s_lshl_b32 s%d, s%d, 10" % (t0, t0)); A("s_add_u32 s%d, s%d, %d" % (sACT, t0, ACT))
        def unit(stg_off, dst, tags, nm):
            o = []
            for ch in range(2):
                for q in range(2): o.append(I("ds_read_b64_tr_b16 v[%d:%d], v%d offset:%d" % (UW + 4 * ch + 2 * q, UW + 4 * ch + 2 * q + 1, vUR[ch], stg_off + 1024 * q), need=tags))
            for ch in range(2): o.append(I("buffer_store_dwordx4 v[%d:%d], v%d, %s, s%d offen offset:%d sc1" % (UW + 4 * ch, UW + 4 * ch + 3, self.vL16, sr(S_WS, 4), dst, 1024 * ch), tag="%s_%d" % (nm, ch)))
            return o
        s += [Need("u1raw0", "u1raw1")]
        l3 = self.lab("skipu")
        A("s_cmp_lg_u32 s%d, 0" % sHAS2); A("s_cbranch_scc1 %s" % l3)
        s += maybe(unit(STG2 - STG, u2d, [], "u2st") + L("s_nop 1"))
        A("%s:" % l3)
        s += unit(0, u1d, [], "u1st")
        for ch in range(8):
            for k in range(4): A("ds_read_b128 %s, v%d offset:%d" % (vr(X + 16 * ch + 4 * k, 4), vXR[k], (ch % 5) * 4096), need=["x%d_%d" % (ch, g) for g in range(4)])
            if ch < 3:
                s.append(Need(regs=[vr(X + 16 * ch, 16)])); s += xdma(ch + 5)
            if ch == 3: s += self.g_poll_issue(self.vINIT, self.vFLG, S_DBG, "0")
            if ch == 7:
                s.append(Need(regs=[vr(X + 16 * ch, 16)])); s += self.lds_signal(C_FREEX, self.vZ, self.vONE)
            for d in range(16):
                A("v_dot2c_f32_bf16 v%d, s%d, v%d" % (S1[d % 2], sC0, X + 16 * ch + d)); A("v_dot2c_f32_bf16 v%d, v%d, v%d" % (S2[d % 2], X + 16 * ch + d, X + 16 * ch + d))
        s += self.stamp(1, self.vST)
        A("v_add_f32 v%d, v%d, v%d" % (S1[0], S1[0], S1[1])); A("v_add_f32 v%d, v%d, v%d" % (S2[0], S2[0], S2[1]))
        A("v_mov_b32 v%d, v%d" % (S1[1], S1[0])); A("v_mov_b32 v%d, v%d" % (S2[1], S2[0]))
        A("v_permlane32_swap_b32 v%d, v%d" % (S1[0], S1[1])); A("v_permlane32_swap_b32 v%d, v%d" % (S2[0], S2[1]))
        A("v_add_f32 v%d, v%d, v%d" % (S1[0], S1[0], S1[1])); A("v_add_f32 v%d, v%d, v%d" % (S2[0], S2[0], S2[1]))
        for r in range(16): A("v_mul_f32 v%d, 0xbb000000, v%d" % (NEG + r, S1[0]))
        side = L(["v_mul_f32 v%d, 0x3b000000, v%d" % (S2[0], S2[0]), "v_fma_f32 v%d, -v%d, v%d, v%d" % (S2[0], NEG, NEG, S2[0]), "v_max_f32 v%d, 0, v%d" % (S2[0], S2[0]),
                  "v_add_f32 v%d, 0x%x, v%d" % (S2[0], EPS5, S2[0]), "v_rsq_f32 v%d, v%d" % (S2[0], S2[0]), "s_nop 0", "v_mul_f32 v%d, 0x%x, v%d" % (self.vR, LOG2E, S2[0])])
        Db = [self.ACC[0], self.ACC[1], D3]
        groups = []
        for p in range(18):
            for hf in range(2):
                g = []
                if p < 16:
                    D = Db[p % 3]
                    g.append(I("v_mfma_f32_32x32x16_bf16 %s, %s, %s, %s" % (vr(D, 16), vr(SEL + 4 * hf, 4), vr(X + 8 * p + 4 * hf, 4), vr(NEG, 16) if hf == 0 else vr(D, 16))))
                if p >= 2:
                    D = Db[(p - 2) % 3]
                    for k in range(4): g.append(I("v_cvt_pk_bf16_f32 v%d, v%d, v%d" % (X + 8 * (p - 2) + 4 * hf + k, D + 8 * hf + 2 * k, D + 8 * hf + 2 * k + 1)))
                groups.append(g)
        s += interleave(groups, side, 0, 4)
        A("v_readfirstlane_b32 s%d, v%d" % (sT[0], self.vINIT))
        a = self.lab("init"); b = self.lab("initr")
        A("s_cmp_eq_u32 s%d, 0" % sT[0]); A("s_cbranch_scc1 %s" % a); A("%s:" % b)
        self.slow += L(["%s:" % a, "s_add_u32 s%d, s%d, 1" % (sSPIN, sSPIN), "s_cmp_gt_u32 s%d, %d" % (sSPIN, c.spin), "s_cbranch_scc1 %s" % b,
                        "buffer_load_dword v%d, v%d, %s, 0 offen sc1" % (self.vINIT, self.vFLG, sr(S_DBG, 4)), "s_waitcnt vmcnt(0)", "v_readfirstlane_b32 s%d, v%d" % (sT[0], self.vINIT), "s_nop 0",
                        "s_cmp_eq_u32 s%d, 0" % sT[0], "s_cbranch_scc1 %s" % a, "s_branch %s" % b])
        s += self.a_signal(self.vONE, self.vFLG, u1f, need=["u1st_0", "u1st_1"])
        l4 = self.lab("skipu")
        A("s_cmp_lg_u32 s%d, 0" % sHAS2); A("s_cbranch_scc1 %s" % l4)
        s += self.a_signal(self.vONE, self.vFLG, u2f, maybe=True)
        A("%s:" % l4)
        s += self.stamp(2, self.vST)
        A("s_cmp_eq_u32 s%d, 0" % sTY); A("s_cbranch_scc1 L_p1a")
        return s

    def tiles(self, specs):
        X = self.X; BF = self.BF; n = len(specs); s = []
        def rd(t, k):
            sl = BF + 4 * ((32 * t + k) % 8)
            return [I("ds_read_b64_tr_b16 v[%d:%d], v%d offset:%d" % (sl + 2 * q, sl + 2 * q + 1, specs[t]["tr"], 2048 * k + 512 * q)) for q in range(2)]
        s += self.lds_wait(C_FULL + 0, self.vZ, self.vPOLL)
        s += self.stamp(3, self.vST)
        for k in range(7): s += rd(0, k)
        for t, sp in enumerate(specs):
            acc = self.ACC[t % 2]; groups = []
            for k in range(32):
                g = []; sl = BF + 4 * ((32 * t + k) % 8)
                if k % 4 == 0: g.append(Need(regs=[vr(BF + 4 * ((32 * t + k + 3) % 8), 4)]))
                if k == 28 and sp["last"] and sp.get("free") is not None: g += self.lds_signal(C_FREE + 4 * sp["free"], self.vZ, self.vONE)
                a, b = (vr(X + 4 * k, 4), vr(sl, 4)) if sp["swap"] else (vr(sl, 4), vr(X + 4 * k, 4))
                g.append(I("v_mfma_f32_32x32x16_bf16 %s, %s, %s, %s" % (vr(acc, 16), a, b, "0" if k == 0 else vr(acc, 16))))
                nxt = t + 1 < n and specs[t + 1]["blk"] != sp["blk"]
                if nxt and k == 20: g += self.lds_poll_issue(C_FULL + 4 * specs[t + 1]["blk"], self.vZ, self.vPOLL)
                if nxt and k == 24: g += self.lds_poll_check(C_FULL + 4 * specs[t + 1]["blk"], self.vZ, self.vPOLL)
                if k + 7 < 32: g += rd(t, k + 7)
                elif t + 1 < n: g += rd(t + 1, k + 7 - 32)
                groups.append(g)
            side = specs[t - 1]["epi"] if t > 0 else sp.get("pre", [])
            s += interleave(groups, side, 2 if t > 0 else 0, 32)
            s += self.stamp(4 + t, self.vST)
        s += specs[-1]["epi"]
        return s

    def publish(self, val, need):
        return self.a_signal(self.vONE, self.vFLG, self.sAF, off=4 * val, need=need)

    def p1_m(self):
        s = []; A = lambda t, **k: s.extend([I(t, **k)] if k else L(t))
        a0 = 16; u0 = 32; e0 = 36; o0 = 40; vB7 = 48; vT7 = 49
        A("v_add_u32 v%d, %d, v%d" % (self.vBA, BIAS, self.vBA))
        A("s_and_b32 s%d, s%d, 1" % (sT[0], sG)); A("s_lshl_b32 s%d, s%d, 7" % (sT[1], sT[0])); A("v_add_u32 v%d, s%d, v%d" % (vB7, sT[1], self.vBA))
        A("s_lshl_b32 s%d, s%d, 6" % (sT[1], sT[0])); A("v_xor_b32 v%d, s%d, v%d" % (vT7, sT[1], self.vTR + 2))
        specs = []
        for t in range(7):
            acc = self.ACC[t % 2]; e = []
            for q in range(4): e.append(I("ds_read_b128 %s, v%d offset:%d" % (vr(a0 + 4 * q, 4), self.vBA if t < 6 else vB7, 128 * t + 32 * q)))
            e.append(I("s_add_u32 s%d, s%d, %d" % (sT[2], self.sACT, 8192 * t)))
            for q in range(4):
                rr = range(4)
                e += [I("v_fmac_f32 v%d, v%d, v%d" % (a0 + 4 * q + r, acc + 4 * q + r, self.vR)) for r in rr]
                e += [I("v_exp_f32 v%d, v%d" % (u0 + r, a0 + 4 * q + r)) for r in rr]
                e += [I("v_fma_f32 v%d, v%d, -0.5, -1.0" % (e0 + r, u0 + r)) for r in rr]
                e += [I("v_fma_f32 v%d, v%d, v%d, -1.0" % (e0 + r, u0 + r, e0 + r)) for r in rr]
                e += [I("v_rcp_f32 v%d, v%d" % (e0 + r, e0 + r)) for r in rr]
                e += [I("v_fmac_f32 v%d, v%d, v%d" % (a0 + 4 * q + r, a0 + 4 * q + r, e0 + r)) for r in rr]
                e += [I("v_cvt_pk_bf16_f32 v%d, v%d, v%d" % (o0 + 2 * q + k, a0 + 4 * q + 2 * k, a0 + 4 * q + 2 * k + 1)) for k in range(2)]
                if q == 3 and t > 0: e += self.publish(t - 1, ["act%d_0" % (t - 1), "act%d_1" % (t - 1)])
                if q % 2 == 1: e.append(I("buffer_store_dwordx4 %s, v%d, %s, s%d offen offset:%d sc1" % (vr(o0 + 4 * (q // 2), 4), self.vL16, sr(S_WS, 4), sT[2], 2048 * (q // 2)), tag="act%d_%d" % (t, q // 2)))
            blk = t // 2
            specs.append(dict(tr=(self.vTR + 2 * (blk % 2) + t % 2) if t < 6 else vT7, swap=False, blk=blk, last=(t % 2 == 1), free=blk if blk < 2 else None, epi=e))
        s += self.tiles(specs)
        s += self.publish(6, ["act6_0", "act6_1"])
        s += self.stamp(11, self.vST)
        A("s_branch L_p1_done")
        return s

    def p1_a(self):
        c = self.c; s = []; A = lambda t, **k: s.extend([I(t, **k)] if k else L(t))
        X = self.X
        R16 = 16; PK = [32, 40]; VV = 48; a0 = 56; u0 = 60; ONES = 48
        PQ = [16, 24]; vSP = 12; vZPw = 14
        sKS, sKZ, sKF, sKFr = sA[12:16]
        A("L_p1a:")
        A("s_mov_b32 s%d, 0x%x" % (sC0, LN2)); A("s_mov_b32 s%d, 0x%x" % (sC1, EPS6))
        A("s_lshl_b32 s%d, s%d, 7" % (sT[0], sW)); A("s_add_u32 s%d, s%d, %d" % (sT[0], sT[0], RTAB))
        A("v_and_b32 v56, 31, v0"); A("v_lshl_add_u32 v57, v56, 2, s%d" % sT[0]); A("ds_write_b32 v57, v%d" % self.vR)
        A("v_add_u32 v57, s%d, v%d" % (sT[0], self.vBA))
        for q in range(4): A("ds_read_b128 %s, v57 offset:%d" % (vr(R16 + 4 * q, 4), 32 * q))
        pre = []
        P = lambda t, **k: pre.extend([I(t, **k)] if k else L(t))
        for r in range(4): P("v_mov_b32 v%d, 0x3f803f80" % (ONES + r))
        P("s_lshl_b32 s%d, s%d, 12" % (sT[0], sW)); P("s_add_u32 s%d, s%d, %d" % (sT[0], sT[0], SP)); P("v_add_u32 v%d, s%d, v%d" % (vSP, sT[0], self.vL16))
        P("s_lshl_b32 s%d, s%d, 8" % (sT[0], sW)); P("s_add_u32 s%d, s%d, %d" % (sT[0], sT[0], ZP)); P("v_lshl_add_u32 v%d, v56, 2, s%d" % (vZPw, sT[0]))
        P("s_lshl_b32 s%d, s%d, 2" % (sKS, sG)); P("s_add_u32 s%d, s%d, s%d" % (sKS, sKS, sW)); P("s_lshl_b32 s%d, s%d, 14" % (sKS, sKS)); P("s_add_u32 s%d, s%d, %d" % (sKS, sKS, KVS))
        P("s_lshl_b32 s%d, s%d, 12" % (sKZ, sG)); P("s_add_u32 s%d, s%d, %d" % (sKZ, sKZ, KVZ))
        P("s_lshl_b32 s%d, s%d, 2" % (sKF, sG)); P("s_add_u32 s%d, s%d, s%d" % (sKF, sKF, sW)); P("s_lshl_b32 s%d, s%d, 7" % (sKF, sKF)); P("s_add_u32 s%d, s%d, %d" % (sKF, sKF, KVF))
        def phi(acc, dst, scale):
            e = []
            for q in range(4):
                rr = range(4)
                e += [I("v_mul_f32 v%d, v%d, v%d" % (a0 + r, acc + 4 * q + r, scale(4 * q + r))) for r in rr]
                e += [I("v_exp_f32 v%d, v%d clamp" % (u0 + r, a0 + r)) for r in rr]
                e += [I("v_add_f32 v%d, s%d, v%d" % (u0 + r, sC1, u0 + r)) for r in rr]
                e += [I("v_fma_f32 v%d, v%d, s%d, v%d" % (a0 + r, a0 + r, sC0, u0 + r)) for r in rr]
                e += [I("v_max_f32 v%d, v%d, v%d" % (a0 + r, a0 + r, u0 + r)) for r in rr]
                e += [I("v_cvt_pk_bf16_f32 v%d, v%d, v%d" % (dst + 2 * q + k, a0 + 2 * k, a0 + 2 * k + 1)) for k in range(2)]
            return e
        pad = lambda n: [I("s_nop 0", raw=True) for _ in range(n)]
        specs = []
        for u in range(2):
            acc = self.ACC[u]
            e = phi(acc, PK[u], lambda r: R16 + r)
            e += [I("v_mfma_f32_32x32x16_bf16 %s, %s, %s, %s" % (vr(acc, 16), vr(ONES, 4), vr(PK[u] + 4 * k, 4), "0" if k == 0 else vr(acc, 16))) for k in range(2)]
            e += pad(12)
            e.append(I("ds_write_b32 v%d, v%d offset:%d" % (vZPw, acc, 128 * u), tag="zp%d" % u))
            e += pad(10)
            specs.append(dict(tr=self.vTR + u, swap=True, blk=0, last=(u == 1), free=0, epi=e, pre=pre))
        for u in range(2):
            acc = self.ACC[u]; e = []
            for q in range(4):
                e += [I("v_mul_f32 v%d, v%d, v%d" % (a0 + r, acc + 4 * q + r, R16 + 4 * q + r)) for r in range(4)]
                e += [I("v_cvt_pk_bf16_f32 v%d, v%d, v%d" % (VV + 2 * q + k, a0 + 2 * k, a0 + 2 * k + 1)) for k in range(2)]
            e += [I("v_mfma_f32_32x32x16_bf16 %s, %s, %s, %s" % (vr(acc, 16), vr(PK[u] + 4 * k, 4), vr(VV + 4 * k, 4), "0" if k == 0 else vr(acc, 16))) for k in range(2)]
            e += pad(12)
            e += [I("v_cndmask_b32 v%d, v%d, v%d, s[%d:%d]" % (a0 + r, acc + 8 + r, acc + r, sM16, sM16 + 1)) for r in range(8)]
            e += [I("ds_write_b128 v%d, %s offset:%d" % (vSP, vr(a0 + 4 * k, 4), 2048 * u + 1024 * k), tag="sp%d_%d" % (u, k)) for k in range(2)]
            if u == 1:
                e += self.lds_signal(C_KVP, self.vZ, self.vONE, need=["sp1_0", "sp1_1"])
                e += pad(12)
                KQ = 32
                e += self.lds_wait(C_KVP, self.vZ, self.vFV)
                e += L(["s_lshl_b32 s%d, s%d, 10" % (sT[0], sW), "s_add_u32 s%d, s%d, %d" % (sT[0], sT[0], SP), "v_add_u32 v%d, s%d, v%d" % (vSP, sT[0], self.vL16),
                        "v_lshlrev_b32 v%d, 2, v0" % vZPw, "v_add_u32 v%d, %d, v%d" % (a0, ZP, vZPw)])
                e += [I("ds_read_b128 %s, v%d offset:%d" % (vr(KQ + 4 * k, 4), vSP, 4096 * k)) for k in range(4)]
                e += [I("ds_read_b32 v%d, v%d offset:%d" % (u0 + k, a0, 256 * k)) for k in range(4)]
                e += L(["s_lshl_b32 s%d, s%d, 10" % (sT[0], sI), "s_add_u32 s%d, s%d, s%d" % (sT[0], sT[0], sKS),
                        "s_lshl_b32 s%d, s%d, 8" % (sT[1], sI), "s_add_u32 s%d, s%d, s%d" % (sT[1], sT[1], sKZ)])
                e += [I("v_add_f32 v%d, v%d, v%d" % (KQ + r, KQ + r, KQ + 4 + r)) for r in range(4)]
                e += [I("v_add_f32 v%d, v%d, v%d" % (KQ + 8 + r, KQ + 8 + r, KQ + 12 + r)) for r in range(4)]
                e += [I("v_add_f32 v%d, v%d, v%d" % (KQ + r, KQ + r, KQ + 8 + r)) for r in range(4)]
                e += L(["v_add_f32 v%d, v%d, v%d" % (u0, u0, u0 + 1), "v_add_f32 v%d, v%d, v%d" % (u0 + 2, u0 + 2, u0 + 3), "v_add_f32 v%d, v%d, v%d" % (u0, u0, u0 + 2)])
                lz = self.lab("skipz")
                e += [I("s_cmp_lg_u32 s%d, 0" % sW), I("s_cbranch_scc1 %s" % lz, glue=True),
                      I("buffer_store_dword v%d, v%d, %s, s%d offen sc1" % (u0, vZPw, sr(S_WS, 4), sT[1]), tag="kvz", maybe=True, glue=True), I("%s:" % lz, glue=True)]
                e.append(I("buffer_store_dwordx4 %s, v%d, %s, s%d offen sc1" % (vr(KQ, 4), self.vL16, sr(S_WS, 4), sT[0]), tag="kvs"))
            else: e += pad(40)
            specs.append(dict(tr=self.vTR + 2 + u, swap=True, blk=1, last=(u == 1), free=None, epi=e))
        for u in range(2):
            acc = self.ACC[u]
            e = phi(acc, PQ[u], lambda r: self.vR)
            if u == 0: e += self.a_signal(self.vONE, self.vFLG, sKF, need=["kvs", "kvz"])
            else: e = e[:40] + self.a_poll_issue(self.vPOLL, self.vFLG, "s%d" % sKF) + e[40:]
            specs.append(dict(tr=self.vTR + u, swap=False, blk=2, last=(u == 1), free=None, epi=e))
        s += self.tiles(specs)
        s += self.a_poll_check(self.vPOLL, self.vFLG, "s%d" % sKF, 16)
        s += self.stamp(10, self.vST)
        G = X; ZG = X + 64
        lz = self.lab("skipz")
        A("s_cmp_lg_u32 s%d, 0" % sW); A("s_cbranch_scc1 %s" % lz)
        s += maybe([I("buffer_load_dwordx4 %s, v%d, %s, s%d offen offset:%d sc1" % (vr(ZG + 4 * k, 4), self.vL16, sr(S_WS, 4), sKZ, 1024 * k)) for k in range(4)])
        A("%s:" % lz)
        for k in range(16):
            if k % 4 == 0 and k: A("s_add_u32 s%d, s%d, 4096" % (sKS, sKS))
            A("buffer_load_dwordx4 %s, v%d, %s, s%d offen offset:%d sc1" % (vr(G + 4 * k, 4), self.vL16, sr(S_WS, 4), sKS, 1024 * (k % 4)))
        vSRw, vSRr, vZRr, vZRw = 32, 33, 34, 35
        A("v_lshlrev_b32 v%d, 3, v0" % vSRr); A("v_add_u32 v%d, %d, v%d" % (vSRr, SR, vSRr)); A("s_lshl_b32 s%d, s%d, 9" % (sT[0], sW)); A("v_add_u32 v%d, s%d, v%d" % (vSRw, sT[0], vSRr))
        A("v_add_u32 v%d, %d, v%d" % (vZRw, ZR, self.vL16))
        A("v_cndmask_b32 v%d, 0, 64, s[%d:%d]" % (vZRr, sM16, sM16 + 1)); A("v_add_u32 v%d, v%d, v%d" % (vZRr, vZRr, self.vBA)); A("v_add_u32 v%d, %d, v%d" % (vZRr, ZR, vZRr))
        lz = self.lab("skipz")
        s.append(Need(regs=[vr(G, 4)]))
        A("s_cmp_lg_u32 s%d, 0" % sW); A("s_cbranch_scc1 %s" % lz)
        z = []
        for k in (1, 2, 3): z += [I("v_add_f32 v%d, v%d, v%d" % (ZG + r, ZG + r, ZG + 4 * k + r)) for r in range(4)]
        for sw in ("32", "16"):
            z += [I("v_mov_b32 v%d, v%d" % (ZG + 4 + r, ZG + r)) for r in range(4)]
            z += [I("v_permlane%s_swap_b32 v%d, v%d" % (sw, ZG + r, ZG + 4 + r)) for r in range(4)]
            z += [I("v_add_f32 v%d, v%d, v%d" % (ZG + r, ZG + r, ZG + 4 + r)) for r in range(4)]
        z += L(["s_mov_b64 exec, 0xffff", "ds_write_b128 v%d, %s" % (vZRw, vr(ZG, 4)), "s_mov_b64 exec, -1"])
        s += maybe(z)
        A("%s:" % lz)
        for k in range(1, 16):
            b = 0 if k < 2 else (k % 2) * 4
            if k == 1: continue
            for r in range(4): A("v_add_f32 v%d, v%d, v%d" % (G + b + r, G + b + r, G + 4 * k + r))
        for r in range(4): A("v_add_f32 v%d, v%d, v%d" % (G + r, G + r, G + 4 + r))
        for k in range(2): A("v_cvt_pk_bf16_f32 v%d, v%d, v%d" % (G + 8 + k, G + 2 * k, G + 2 * k + 1))
        A("ds_write_b64 v%d, %s" % (vSRw, vr(G + 8, 2)))
        A("s_waitcnt lgkmcnt(0)")
        s += self.lds_signal(C_KVR, self.vZ, self.vONE)
        s += self.lds_wait(C_KVR, self.vZ, self.vPOLL)
        SB = X; ZF = X + 8; ZB = X + 24; PH = X + 32; DO = X + 48
        for k in range(4): A("ds_read_b64 %s, v%d offset:%d" % (vr(SB + 2 * k, 2), vSRr, 512 * k))
        for u in range(2):
            for q in range(2): A("ds_read_b128 %s, v%d offset:%d" % (vr(ZF + 8 * u + 4 * q, 4), vZRr, 128 * u + 32 * q))
        for k in range(8): A("v_cvt_pk_bf16_f32 v%d, v%d, v%d" % (ZB + k, ZF + 2 * k, ZF + 2 * k + 1))
        for u in range(2):
            for k in range(4): A("v_cndmask_b32 v%d, v%d, v%d, s[%d:%d]" % (PH + 8 * u + k, ZB + 4 * u + k, SB + 4 * u + k, sM16, sM16 + 1))
            for k in range(4): A("v_cndmask_b32 v%d, v%d, v%d, s[%d:%d]" % (PH + 8 * u + 4 + k, SB + 4 * u + k, ZB + 4 * u + k, sM16, sM16 + 1))
        for hd in range(4): A("v_mfma_f32_32x32x16_bf16 %s, %s, %s, 0" % (vr(DO + 16 * hd, 16), vr(PH + 4 * hd, 4), vr(PQ[0] + 4 * hd, 4)))
        A("s_add_u32 s%d, s%d, 4096" % (sT[0], self.sACT))
        OO = 36
        for hd in range(4):
            D = DO + 16 * hd; num = D + (0 if hd % 2 == 0 else 8); den = D + (8 if hd % 2 == 0 else 0)
            A("v_add_f32 v%d, s%d, v%d" % (den, sC1, den)); A("v_rcp_f32 v%d, v%d" % (den, den))
            for r in range(8): A("v_mul_f32 v%d, v%d, v%d" % (num + r, num + r, den))
            for k in range(4): A("v_cvt_pk_bf16_f32 v%d, v%d, v%d" % (OO + 4 * hd + k, num + 2 * k, num + 2 * k + 1))
            A("buffer_store_dwordx4 %s, v%d, %s, s%d offen offset:%d sc1" % (vr(OO + 4 * hd, 4), self.vL16, sr(S_WS, 4), self.sACT if hd < 2 else sT[0], 2048 * (hd % 2)), tag="o%d" % hd)
        s += self.publish(7, ["o%d" % h for h in range(4)])
        s += self.stamp(11, self.vST)
        return s

    def final_pre(self, vA, vO, vXr):
        s = []; A = lambda t, **k: s.extend([I(t, **k)] if k else L(t))
        A("v_lshrrev_b32 v%d, 3, v0" % vA); A("v_and_b32 v%d, 7, v0" % vO)
        A("s_lshl_b32 s%d, s%d, 6" % (sT[0], sRT)); A("s_lshl_b32 s%d, s%d, 3" % (sT[1], sW)); A("s_add_u32 s%d, s%d, s%d" % (sT[0], sT[0], sT[1]))
        A("s_lshl_b32 s%d, s%d, 10" % (sT[0], sT[0])); A("s_lshl_b32 s%d, s%d, 7" % (sT[2], sCG)); A("s_add_u32 s%d, s%d, s%d" % (sT[5], sT[0], sT[2]))
        A("v_bfe_u32 v%d, v%d, 1, 1" % (vXr, vA)); A("v_lshl_add_u32 v%d, v%d, 3, v%d" % (vXr, vXr, vA)); A("v_xor_b32 v%d, v%d, v%d" % (vXr, vXr, vO))
        A("v_lshlrev_b32 v%d, 4, v%d" % (vO, vO)); A("v_lshl_add_u32 v%d, v%d, 10, v%d" % (vO, vA, vO))
        A("v_lshlrev_b32 v%d, 8, v%d" % (vA, vA)); A("v_lshl_add_u32 v%d, v%d, 4, v%d" % (vA, vXr, vA)); A("s_lshl_b32 s%d, s%d, 11" % (sT[1], sW)); A("v_add_u32 v%d, s%d, v%d" % (vA, sT[1], vA))
        A("v_xor_b32 v%d, 128, v%d" % (vA + 1, vA))
        A("buffer_load_dwordx4 %s, v%d, %s, s%d offen" % (vr(vXr, 4), vO, sr(S_X, 4), sT[5]))
        return s
    def final(self, vA, vO, vXr, T, vST):
        s = []; A = lambda t, **k: s.extend([I(t, **k)] if k else L(t))
        for w in range(4):
            for e in range(2): A("ds_read_b128 %s, v%d offset:%d" % (vr(T + 8 * w + 4 * e, 4), vA + e, 16384 * w))
        XF = T + 32
        A("s_mov_b32 s%d, 0x%x" % (sC0, LN2))
        for k in range(4):
            A("v_lshlrev_b32 v%d, 16, v%d" % (XF + 2 * k, vXr + k)); A("v_and_b32 v%d, 0xffff0000, v%d" % (XF + 2 * k + 1, vXr + k))
        for r in range(8): A("v_add_f32 v%d, v%d, v%d" % (T + r, T + r, T + 8 + r))
        for r in range(8): A("v_add_f32 v%d, v%d, v%d" % (T + 16 + r, T + 16 + r, T + 24 + r))
        for r in range(8): A("v_add_f32 v%d, v%d, v%d" % (T + r, T + r, T + 16 + r))
        for r in range(8): A("v_fmac_f32 v%d, s%d, v%d" % (XF + r, sC0, T + r))
        for k in range(4): A("v_cvt_pk_bf16_f32 v%d, v%d, v%d" % (T + k, XF + 2 * k, XF + 2 * k + 1))
        A("buffer_store_dwordx4 %s, v%d, %s, s%d offen" % (vr(T, 4), vO, sr(S_OUT, 4), sT[5]))
        if self.c.stamps:
            A("s_waitcnt vmcnt(0)")
            s += self.stamp(15, vST)
            A("s_lshl_b32 s%d, s2, 3" % sT[0]); A("s_add_u32 s%d, s%d, s%d" % (sT[0], sT[0], sW)); A("s_lshl_b32 s%d, s%d, 8" % (sT[0], sT[0])); A("s_add_u32 s%d, s%d, %d" % (sT[0], sT[0], STAMPS))
            A("v_writelane_b32 v%d, s%d, 31" % (vST, sSPIN))
            A("v_lshlrev_b32 v%d, 2, v0" % T); A("buffer_store_dword v%d, v%d, %s, s%d offen" % (vST, T, sr(S_WS, 4), sT[0]))
        A("s_endpgm")
        return s
    def p1_tail(self):
        s = L("L_p1_done:")
        s += self.final_pre(16, 18, 20)
        s += L(["s_barrier", "s_barrier"])
        s += self.final(16, 18, 20, 32, self.vST)
        return s

    def l_head(self):
        c = self.c; s = []; A = lambda t, **k: s.extend([I(t, **k)] if k else L(t))
        self.lK = sA[0:4]; self.lCOL = sA[4:8]; self.lW4, self.lA, self.lB, self.lAF, self.lWF = sA[8:13]
        self.lvG = [4, 5, 6, 7]
        w4 = self.lW4
        A("L_lwave:")
        if c.stamps: A("v_mov_b32 v9, 0")
        A("s_sub_u32 s%d, s%d, 4" % (w4, sW))
        A("s_lshl_b32 s%d, s%d, 9" % (sPITCH, sTY)); A("s_add_u32 s%d, s%d, 3072" % (sPITCH, sPITCH))
        A("v_lshlrev_b32 v1, 4, v0"); A("v_mov_b32 v2, %d" % CNT); A("v_mov_b32 v3, 1")
        A("v_lshrrev_b32 v10, 3, v0"); A("v_and_b32 v11, 7, v0"); A("v_bfe_u32 v12, v10, 1, 1"); A("v_lshlrev_b32 v12, 2, v12"); A("v_xor_b32 v12, v12, v11"); A("v_lshlrev_b32 v12, 4, v12")
        A("v_mul_lo_u32 v10, v10, s%d" % sPITCH); A("v_add_u32 v4, v10, v12")
        A("s_lshl_b32 s%d, s%d, 3" % (sT[0], sPITCH)); A("s_sub_u32 s%d, s%d, 1024" % (sT[0], sT[0]))
        for g in range(1, 4): A("v_add_u32 v%d, s%d, v%d" % (4 + g, sT[0], 3 + g))
        for n in range(4):
            A("s_lshl_b32 s%d, s%d, 1" % (sT[0], sROT)); A("s_add_u32 s%d, s%d, s%d" % (sT[0], sT[0], w4)); A("s_add_u32 s%d, s%d, %d" % (sT[0], sT[0], 4 * n)); A("s_and_b32 s%d, s%d, 15" % (sT[0], sT[0]))
            A("s_lshl_b32 s%d, s%d, 5" % (sT[0], sT[0])); A("s_mul_i32 s%d, s%d, s%d" % (self.lK[n], sT[0], sPITCH))
        t0, t1, t2 = sT[:3]
        A("s_lshr_b32 s%d, s%d, 1" % (t0, sG)); A("s_mul_i32 s%d, s%d, 896" % (t0, t0)); A("s_add_u32 s%d, s%d, 384" % (self.lCOL[3], t0))
        A("s_and_b32 s%d, s%d, 1" % (t1, sG)); A("s_lshl_b32 s%d, s%d, 9" % (t1, t1)); A("s_add_u32 s%d, s%d, s%d" % (t0, t0, t1))
        A("s_lshl_b32 s%d, s%d, 7" % (t1, sG))
        A("s_cmp_eq_u32 s%d, 0" % sTY); A("s_cselect_b32 s%d, s%d, s%d" % (t0, t1, t0))
        for b, (ca, cm) in enumerate(((1024, 0), (2048, 128), (0, 256))):
            A("s_cmp_eq_u32 s%d, 0" % sTY); A("s_cselect_b32 s%d, %d, %d" % (t1, ca, 0)); A("s_cselect_b32 s%d, %d, %d" % (t2, 0, cm))
            A("s_add_u32 s%d, s%d, s%d" % (t1, t1, t2)); A("s_add_u32 s%d, s%d, s%d" % (self.lCOL[b], t0, t1))
        A("s_mul_i32 s%d, s%d, 36" % (t2, w4))
        A("s_mul_i32 s%d, s%d, 144" % (t0, sRT)); A("s_add_u32 s%d, s%d, s%d" % (t0, t0, t2)); A("s_lshl_b32 s%d, s%d, 11" % (t0, t0)); A("s_add_u32 s%d, s%d, %d" % (self.lA, t0, ACT))
        A("s_mul_i32 s%d, s%d, 144" % (t0, sCG)); A("s_add_u32 s%d, s%d, s%d" % (t0, t0, t2));
        A("s_lshl_b32 s%d, s%d, 2" % (self.lWF, sCG)); A("s_add_u32 s%d, s%d, s%d" % (self.lWF, self.lWF, w4)); A("s_lshl_b32 s%d, s%d, 7" % (self.lWF, self.lWF)); A("s_add_u32 s%d, s%d, %d" % (self.lWF, self.lWF, W2F))
        A("s_lshl_b32 s%d, s%d, 11" % (t0, t0)); A("s_add_u32 s%d, s%d, %d" % (self.lB, t0, W2T))
        A("s_lshl_b32 s%d, s%d, 2" % (t0, sRT)); A("s_add_u32 s%d, s%d, s%d" % (t0, t0, w4)); A("s_lshl_b32 s%d, s%d, 7" % (self.lAF, t0))
        s += self.srds()
        A("s_cmp_eq_u32 s%d, 0" % sTY); A("s_cselect_b32 s%d, s%d, s%d" % (S_W, KA + 2, KA + 8)); A("s_cselect_b32 s%d, s%d, s%d" % (S_W + 1, KA + 3, KA + 9))
        A("s_lshl_b32 s%d, s%d, 9" % (S_W + 2, sPITCH)); A("s_mov_b32 s%d, 0x20000" % (S_W + 3))
        s += self.srd(S_B1, KA + 10, 3584)
        if c.probe:
            idx, N, per = c.probe
            lp = self.lab("probe"); lq = self.lab("probeq")
            A("s_cmp_lg_u32 s%d, 0" % w4); A("s_cbranch_scc1 %s" % lq)
            s += maybe(self.srd(S_U1, KA + 2 * idx, 256 * per) + L(["s_mul_i32 s%d, s2, %d" % (t0, per), "v_mov_b32 v12, s%d" % t0, "s_mov_b32 s%d, %d" % (t1, N), "s_mov_b64 exec, 1", "%s:" % lp,
                       "buffer_load_dword v13, v12, %s, 0 offen" % sr(S_U1, 4), "s_waitcnt vmcnt(0)", "v_add_u32 v12, 128, v12", "s_sub_u32 s%d, s%d, 1" % (t1, t1), "s_cmp_lg_u32 s%d, 0" % t1, "s_cbranch_scc1 %s" % lp, "s_mov_b64 exec, -1"]))
            A("%s:" % lq)
        A("s_barrier")
        lz = self.lab("noinit")
        A("s_or_b32 s%d, s2, s%d" % (t0, w4)); A("s_cmp_lg_u32 s%d, 0" % t0); A("s_cbranch_scc1 %s" % lz)
        z = L(["v_mov_b32 v%d, 0" % r for r in range(12, 16)])
        for k in range(FLG_KB):
            z += L(["s_mov_b32 s%d, %d" % (t0, 1024 * k), "buffer_store_dwordx4 v[12:15], v1, %s, s%d offen sc1" % (sr(S_WS, 4), t0)])
        z += L(["s_waitcnt vmcnt(0)", "s_mov_b64 exec, 1", "buffer_store_dword v3, v12, %s, 0 offen sc1" % sr(S_DBG, 4), "s_mov_b64 exec, -1"])
        s += maybe(z)
        A("%s:" % lz)
        if c.codepf:
            A("s_getpc_b64 s[%d:%d]" % (sT[2], sT[3])); A("L_pc:")
            A("s_sub_u32 s%d, s%d, L_pc-%s_kernel" % (sT[2], sT[2], NAME)); A("s_subb_u32 s%d, s%d, 0" % (sT[3], sT[3]))
            A("s_lshr_b32 s%d, s2, 3" % t0); A("s_lshl_b32 s%d, s%d, 2" % (t0, t0)); A("s_add_u32 s%d, s%d, s%d" % (t0, t0, w4)); A("s_and_b32 s%d, s%d, 63" % (t0, t0)); A("s_lshl_b32 s%d, s%d, 10" % (t0, t0))
            A("v_lshlrev_b32 v12, 7, v0"); A("v_add_u32 v12, s%d, v12" % t0); A("v_min_u32 v12, L_code_end-%s_kernel-4, v12" % NAME)
            A("s_mov_b64 exec, 0xff"); A("global_load_dword v13, v12, s[%d:%d]" % (sT[2], sT[3])); A("s_mov_b64 exec, -1")
        A("s_cmp_eq_u32 s%d, 0" % sTY); A("s_cbranch_scc1 L_la")
        return s

    def l_body(self, isM):
        c = self.c; s = []; A = lambda t, **k: s.extend([I(t, **k)] if k else L(t))
        vL16, vZ, vONE, vP, vST = 1, 2, 3, 8, 9
        ACC = 192; w4 = self.lW4; nm = "m" if isM else "a"
        if not isM: A("L_la:")
        free = list(range(12, 192, 4))
        vPF = 10; vPW = 11
        def blk(b):
            o = []
            for n in range(4):
                o += L(["s_lshl_b32 s%d, s%d, 12" % (sT[0], w4), "s_add_u32 m0, s%d, %d" % (sT[0], (R0, R1)[b % 2] + 16384 * n), "s_add_u32 s%d, s%d, s%d" % (sT[0], self.lK[n], self.lCOL[b])])
                for g in range(4): o.append(I("buffer_load_dwordx4 v%d, %s, s%d offen offset:%d lds" % (self.lvG[g], sr(S_W, 4), sT[0], 1024 * g), tag="%sb%d_%d" % (nm, b, 4 * n + g)))
            return o
        def full(b, extra=()): return self.lds_signal(C_FULL + 4 * b, vZ, vONE, need=["%sb%d_15" % (nm, b)] + list(extra))
        slotA = {}; slotB = {}
        def ld(kind, n):
            o = []; base = self.lA if kind == "A" else self.lB; tmp = sA[13] if kind == "A" else sA[14]
            if n % 2 == 0: o.append(I("s_add_u32 s%d, s%d, %d" % (tmp, base, 2048 * n)))
            sl = [free.pop(0), free.pop(0)]; (slotA if kind == "A" else slotB)[n] = sl
            for e in range(2): o.append(I("buffer_load_dwordx4 %s, v%d, %s, s%d offen offset:%d sc1" % (vr(sl[e], 4), vL16, sr(S_WS, 4), tmp, 2048 * (n % 2) + 1024 * e)))
            return o
        if isM:
            A("s_mov_b32 s%d, s%d" % (sT[0], self.lCOL[0]))
            for b in range(1, 4):
                A("s_cmp_eq_u32 s%d, %d" % (w4, b)); A("s_cselect_b32 s%d, s%d, s%d" % (sT[0], self.lCOL[b], sT[0]))
            A("v_lshlrev_b32 v14, 1, v0"); A("buffer_load_ushort v15, v14, %s, s%d offen" % (sr(S_B1, 4), sT[0]))
        s += self.stamp(0, vST)
        s += blk(0)
        A("v_cmp_eq_u32 vcc, 0, v0"); A("v_mov_b32 v%d, 0x%x" % (vPW, OOB)); A("v_cndmask_b32 v%d, v%d, 0, vcc" % (vPF, vPW))
        if isM:
            A("v_lshlrev_b32 v15, 16, v15"); A("v_mul_f32 v15, 0x%x, v15" % LOG2E)
            A("s_lshl_b32 s%d, s%d, 8" % (sT[0], w4)); A("s_add_u32 s%d, s%d, %d" % (sT[0], sT[0], BIAS)); A("v_lshl_add_u32 v14, v0, 2, s%d" % sT[0])
            A("ds_write_b32 v14, v15", tag="bias")
        if c.earlyfull0:
            s += full(0, ["bias"] if isM else [])
        s += self.lds_wait(C_FREEX, vZ, vP)
        s += self.stamp(1, vST)
        b1 = blk(1)
        if not c.earlyfull0: s += b1[:14] + full(0, ["bias"] if isM else []) + b1[14:]
        else: s += b1
        A("v_mov_b32 v14, 0")
        s += self.g_poll_issue(vP, 14, S_DBG, "0") + self.g_poll_check(vP, 14, S_DBG, "0", 1)
        s += self.a_poll_issue(vP, vPF, "s%d" % self.lWF)
        s += full(1)
        s += self.stamp(2, vST)
        s += self.a_poll_check(vP, vPF, "s%d" % self.lWF, 36)
        s += self.stamp(3, vST)
        nb = 0
        for _ in range(c.partA): s += ld("B", nb); nb += 1
        s += self.lds_wait(C_FREE + 0, vZ, vP)
        s += self.stamp(4, vST)
        s += blk(2)
        k = 0
        for _ in range(c.partB):
            s += ld("B", nb); nb += 1; k += 1
            if k == 4: s += full(2)
        if k < 4: s += full(2)
        if isM:
            s += self.lds_wait(C_FREE + 4, vZ, vP)
            s += self.stamp(5, vST)
            s += blk(3)
        k = 0; fulld = not isM
        s += self.a_poll_issue(vP, vPF, "s%d" % self.lAF)
        while nb < c.nB:
            s += ld("B", nb); nb += 1; k += 1
            if k == 4 and not fulld: s += full(3); fulld = True
        if not fulld: s += full(3)
        s += self.stamp(6, vST)
        na = 0
        def issueA():
            nonlocal na
            o = []
            if na % 4 == 0 and na <= 28:
                grp = na // 4
                o += self.a_poll_check(vP, vPF, "s%d" % self.lAF, 4, off=4 * grp)
                if grp in (0, 4, 7): o += self.stamp({0: 7, 4: 8, 7: 9}[grp], vST)
                if grp < 7: o += self.a_poll_issue(vP, vPF, "s%d" % self.lAF, off=4 * grp + 4)
            o += ld("A", na); na += 1
            return o
        LA = c.lookA
        while na < LA and len(free) >= 2: s += issueA()
        vRW = None
        for n in range(36):
            for ch in range(2):
                for th in range(2):
                    d = ACC + 16 * (2 * ch + th)
                    A("v_mfma_f32_32x32x16_bf16 %s, %s, %s, %s" % (vr(d, 16), vr(slotB[n][ch], 4), vr(slotA[n][th], 4), "0" if n == 0 else vr(d, 16)))
            free += slotA[n] + slotB[n]
            if nb < 36: s += ld("B", nb); nb += 1
            while na < 36 and na < n + 1 + LA and len(free) >= 2: s += issueA()
            if n == 30:
                r1 = free.pop(0); r2 = free.pop(0); r3 = free.pop(0); r4 = free.pop(0)
                s += self.final_pre(r1, r1 + 2, r2)
                vRW = [r3 + k for k in range(4)] + [r4 + k for k in range(4)]
                t = vRW[1]; t2 = vRW[2]; t3 = vRW[3]
                A("v_and_b32 v%d, 31, v0" % t); A("v_lshrrev_b32 v%d, 5, v0" % t2); A("v_bfe_u32 v%d, v0, 1, 1" % t3); A("v_xor_b32 v%d, v%d, v%d" % (t2, t2, t3))
                A("v_and_b32 v%d, 7, v0" % t3); A("v_lshl_add_u32 v%d, v%d, 3, v%d" % (t2, t2, t3)); A("v_lshlrev_b32 v%d, 4, v%d" % (t2, t2)); A("v_lshl_add_u32 v%d, v%d, 8, v%d" % (t, t, t2))
                A("s_lshl_b32 s%d, s%d, 14" % (sT[0], w4)); A("v_add_u32 v%d, s%d, v%d" % (vRW[0], sT[0], t))
                for k in range(1, 8): A("v_xor_b32 v%d, %d, v%d" % (vRW[k], 16 * k, vRW[0]))
                fin = (r1, r1 + 2, r2)
        s += self.stamp(10, vST)
        A("s_barrier")
        for ch in range(2):
            for th in range(2):
                for q in range(4): A("ds_write_b128 v%d, %s offset:%d" % (vRW[4 * ch + q], vr(ACC + 16 * (2 * ch + th) + 4 * q, 4), 8192 * th))
        A("s_waitcnt lgkmcnt(0)"); A("s_barrier")
        s += self.stamp(11, vST)
        s += self.final(*fin, ACC, vST)
        return s

    def build(self):
        c = self.c
        def run(tr, st): return tr.run(st)
        t0 = Tracker(); out = t0.run(self.prologue())
        tp = copy.deepcopy(t0); tl = copy.deepcopy(t0)
        out += tp.run(self.p1_head())
        tm = copy.deepcopy(tp); ta = copy.deepcopy(tp)
        out += tm.run(self.p1_m()); out += ta.run(self.p1_a())
        tt = Tracker(); out += tt.run(L("s_nop 0") + self.p1_tail())
        out += tl.run(self.l_head())
        tlm = copy.deepcopy(tl); tla = copy.deepcopy(tl)
        out += tlm.run(self.l_body(True)); out += tla.run(self.l_body(False))
        out += self.slow
        out += L(["L_end:", "s_endpgm", "L_code_end:"])
        self.stats = dict(p1m=(tm.nnop, tm.nwait), p1a=(ta.nnop, ta.nwait), lm=(tlm.nnop, tlm.nwait))
        hdr = open("cdna_kernels/%s.s.ref" % NAME).read().split("; Override")[0]
        txt = hdr + "; @launch grid=(256,1,1) block=(512,1,1) lds=%d\n" % LDS_BYTES
        txt += '.amdgcn_target "amdgcn-amd-amdhsa--gfx950"\n.text\n.globl %s_kernel\n.p2align 8\n.type %s_kernel,@function\n%s_kernel:\n' % (NAME, NAME, NAME)
        txt += text(out) + "\n"
        txt += """.section .rodata,"a"
.p2align 6
.amdhsa_kernel %s_kernel
  .amdhsa_next_free_vgpr 256
  .amdhsa_next_free_sgpr 102
  .amdhsa_accum_offset 256
  .amdhsa_group_segment_fixed_size 0
  .amdhsa_kernarg_size 80
  .amdhsa_user_sgpr_count 2
  .amdhsa_user_sgpr_kernarg_segment_ptr 1
  .amdhsa_system_sgpr_workgroup_id_x 1
.end_amdhsa_kernel
""" % NAME
        return txt
Cfg.earlyfull0 = False
Cfg.lookA = 4
def make(**kw):
    c = Cfg()
    for k, v in kw.items():
        assert hasattr(c, k), k
        setattr(c, k, v)
    g = Gen(c); t = g.build()
    return t, g
if __name__ == "__main__":
    kw = {}
    out = "cdna_kernels/%s.s" % NAME
    for a in sys.argv[1:]:
        k, v = a.split("=")
        if k == "out": out = v
        else: kw[k] = eval(v) if not v.isalpha() or v in ("True", "False") else v
    t, g = make(**kw)
    open(out, "w").write(t); print("written", out, len(t), g.stats)
```
